```python
import torch

def _softmax(x, axis=-1):
    return torch.softmax(x, dim=axis)
def _gelu(x):
    return torch.nn.functional.gelu(x, approximate="tanh")
def _silu(x):
    return torch.nn.functional.silu(x)
def _sigmoid(x):
    return torch.sigmoid(x)
def _layernorm(x, axis=-1, eps=1e-5):
    m = x.mean(dim=axis, keepdim=True)
    v = x.var(dim=axis, keepdim=True, unbiased=False)
    return (x - m) / torch.sqrt(v + eps)
def _scatter_add(tgt, idx, src, axis=0):
    return tgt.clone().index_add_(axis, idx, src)
def _segment_sum(src, seg, n):
    out = torch.zeros((n,) + src.shape[1:], dtype=src.dtype)
    return out.index_add_(0, seg, src)
def _pad(x, pw):
    flat = tuple(v for pair in reversed(pw) for v in pair)
    return torch.nn.functional.pad(x, flat)

kernel_name = 'interleave_layers__spectral_fnet__swiglu_ffn__prompt'

def setup_inputs():

    _w = (lambda a: (lambda t: t.to(torch.bfloat16) if t.is_floating_point() else t)(torch.as_tensor(a)))
    def _A_setup():
        B, S, D = 1, 2048, 512
        ns = torch.arange(S)[:, None] * torch.arange(S)[None, :]
        nd = torch.arange(D)[:, None] * torch.arange(D)[None, :]
        Ws_re = torch.cos(-2.0 * torch.pi * ns / S).to(float)
        Ws_im = torch.sin(-2.0 * torch.pi * ns / S).to(float)
        Wd_re = torch.cos(-2.0 * torch.pi * nd / D).to(float)
        Wd_im = torch.sin(-2.0 * torch.pi * nd / D).to(float)
        return {
            "x": _w((lambda *s: torch.randn(*s, dtype=torch.bfloat16) * 0.05)(B, S, D)),
            "dft_seq_re": _w(Ws_re),
            "dft_seq_im": _w(Ws_im),
            "dft_hid_re": _w(Wd_re),
            "dft_hid_im": _w(Wd_im),
        }
    _A_in = _A_setup()

    def _B_setup():
        B, S, D, F = 1, 2048, 512, 1792
        return {
            "x": _w((lambda *s: torch.randn(*s, dtype=torch.bfloat16) * 0.05)(B, S, D)),
            "w_gate": _w((lambda *s: torch.randn(*s, dtype=torch.bfloat16) * 0.4)(D, F)),
            "w_up": _w((lambda *s: torch.randn(*s, dtype=torch.bfloat16) * 0.4)(D, F)),
            "w_down": _w((lambda *s: torch.randn(*s, dtype=torch.bfloat16) * 0.4)(F, D)),
        }
    _B_in = _B_setup()

    return {
        "A_x": _A_in["x"],
        "A_dft_seq_re": _A_in["dft_seq_re"],
        "A_dft_seq_im": _A_in["dft_seq_im"],
        "A_dft_hid_re": _A_in["dft_hid_re"],
        "A_dft_hid_im": _A_in["dft_hid_im"],
        "B_x": _B_in["x"],
        "B_w_gate": _B_in["w_gate"],
        "B_w_up": _B_in["w_up"],
        "B_w_down": _B_in["w_down"],
    }

def reference(A_x, A_dft_seq_re, A_dft_seq_im, A_dft_hid_re, A_dft_hid_im, B_x, B_w_gate, B_w_up, B_w_down):
    def _A_ref(x, dft_seq_re, dft_seq_im, dft_hid_re, dft_hid_im):
        a = torch.einsum("bsd,ed->bse", x, dft_hid_re)
        b = torch.einsum("bsd,ed->bse", x, dft_hid_im)
        y = torch.einsum("ts,bse->bte", dft_seq_re, a) - torch.einsum("ts,bse->bte", dft_seq_im, b)
        return y

    def _B_ref(x, w_gate, w_up, w_down):
        g = _silu(x @ w_gate)
        u = x @ w_up
        return (g * u) @ w_down

    x = A_x
    x = x + _A_ref(_layernorm(x, axis=-1), A_dft_seq_re, A_dft_seq_im, A_dft_hid_re, A_dft_hid_im)
    x = x + _B_ref(_layernorm(x, axis=-1), B_w_gate, B_w_up, B_w_down)
    x = x + _A_ref(_layernorm(x, axis=-1), A_dft_seq_re, A_dft_seq_im, A_dft_hid_re, A_dft_hid_im)
    x = x + _B_ref(_layernorm(x, axis=-1), B_w_gate, B_w_up, B_w_down)
    return x
```

```python
import re

class Asm:
    def __init__(self):
        self.lines = []
    def __call__(self, s):
        for l in s.strip("\n").split("\n"):
            self.lines.append("    " + l.strip())
    def label(self, n):
        self.lines.append(f"{n}:")
    def raw(self, s):
        self.lines.append(s)
    def c(self, s):
        self.lines.append(f"    ; {s}")
    def nop(self, n):
        while n > 0:
            k = min(n, 16)
            self(f"s_nop {k-1}")
            n -= k
    def text(self):
        return "\n".join(self.lines) + "\n"

def vr(a, n=1, p="v"):
    return f"{p}{a}" if n == 1 else f"{p}[{a}:{a+n-1}]"
def ar(a, n=1): return vr(a, n, "a")
def sr(a, n=1): return vr(a, n, "s")

_reg = re.compile(r"\b([vas])(\d+)\b|\b([vas])\[(\d+):(\d+)\]")
def regs(tok):
    out = []
    for m in _reg.finditer(tok):
        if m.group(1): out.append((m.group(1), int(m.group(2))))
        else:
            out += [(m.group(3), i) for i in range(int(m.group(4)), int(m.group(5)) + 1)]
    return out

TRANS = ("v_exp_f32", "v_log_f32", "v_rcp_f32", "v_rsq_f32", "v_sqrt_f32", "v_sin_f32", "v_cos_f32", "v_rcp_iflag_f32")
def parse(line):
    l = line.split(";")[0].strip()
    if not l or l.endswith(":") or l.startswith("."): return None
    parts = l.split(None, 1)
    op = parts[0]
    ops = [x.strip() for x in parts[1].split(",")] if len(parts) > 1 else []
    return op, ops

def classify(op, ops):
    w, r = [], []
    a = lambda i: regs(ops[i]) if i < len(ops) else []
    allr = lambda s: [x for o in ops[s:] for x in regs(o)]
    if op.startswith("v_mfma"):
        return "mfma", a(0), allr(1)
    if op.startswith("v_cmp"):
        w = a(0) + ([("vcc", 0)] if ops[0].startswith("vcc") else [])
        return "valu", w, allr(1)
    if op in ("v_readfirstlane_b32", "v_readlane_b32"):
        return "valu", a(0), allr(1)
    if op.startswith("v_permlane") and "swap" in op:
        return "perm", a(0) + a(1), a(0) + a(1)
    if op.startswith("v_"):
        w = a(0); r = allr(1)
        if op.startswith(("v_fmac", "v_dot2c", "v_writelane", "v_pk_fmac")): r = r + a(0)
        if op.startswith("v_cndmask") and (len(ops) < 4 or ops[3].startswith("vcc")): r = r + [("vcc", 0)]
        if "_co_" in op:
            if ops[1].startswith("vcc"): w = w + [("vcc", 0)]
            if op.startswith(("v_addc", "v_subb")): r = r + [("vcc", 0)]
        base = op.replace("_e32", "").replace("_e64", "")
        return ("trans" if base in TRANS else "valu"), w, r
    if op.startswith("ds_"):
        if "read" in op or "permute" in op or "swizzle" in op: return "ds", a(0), allr(1)
        return "ds", [], allr(0)
    if op.startswith(("buffer_", "global_")):
        if "store" in op or ("atomic" in op and "sc0" not in " ".join(ops)): return "vmemst", [], allr(0)
        if " lds" in " " + " ".join(ops) or "load_lds" in op: return "vmemlds", [], allr(0)
        if op in ("buffer_inv", "buffer_wbl2"): return "vmem", [], []
        return "vmem", a(0), allr(1)
    if op.startswith("s_"):
        if op == "s_nop": return "nop", [], []
        if op.startswith(("s_cmp", "s_cbranch", "s_branch", "s_waitcnt", "s_barrier", "s_endpgm", "s_setprio", "s_sleep", "s_bitcmp")): return "salu", [], allr(0)
        w = a(0)
        if ops and ops[0] == "m0": w = [("m0", 0)]
        if ops and ops[0] == "exec": w = [("exec", 0)]
        if "saveexec" in op: w = w + [("exec", 0)]
        return "salu", w, allr(1)
    return "other", [], []

def check_hazards(text, verbose=True):
    probs = []
    hist = []
    lines = text.split("\n")
    for ln, line in enumerate(lines, 1):
        p = parse(line)
        if p is None: continue
        op, ops = p
        kind, w, r = classify(op, ops)
        dist = 0
        for (k2, op2, w2, r2, n2, ln2) in reversed(hist):
            def need(n, why):
                if dist < n: probs.append(f"line {ln}: {line.strip()}  <- line {ln2} {op2}: need {n} wait states, have {dist} ({why})")
            W2 = set(w2); R = set(r); Wn = set(w)
            vW2 = {x for x in W2 if x[0] in "va" and x[0] != "vcc"}
            sW2 = {x for x in W2 if x[0] == "s" or x[0] == "vcc"}
            if k2 in ("valu", "trans", "perm"):
                if kind == "mfma" and vW2 & R: need(2, "VALU->MFMA")
                if kind == "perm" and vW2 & R: need(2, "VALU->permlane")
                if op in ("v_readfirstlane_b32", "v_readlane_b32") and vW2 & R: need(1, "VALU->readlane")
                if k2 == "trans" and kind in ("valu", "perm", "mfma") and vW2 & R: need(1, "trans->VALU")
                if sW2 & R and kind in ("valu", "trans", "perm"): need(2, "VALU sgpr/vcc -> VALU read")
                if sW2 & R and kind.startswith("vmem"): need(5, "VALU sgpr -> VMEM")
                if "dpp" in line and vW2 & R: need(2, "VALU->DPP")
                if ("exec", 0) in W2 and kind == "mfma": need(4, "exec->mfma")
            if k2 == "mfma":
                passes = 8 if "32x32" in op2 else 4
                nd = {8: 12, 4: 8}[passes]
                D = set(w2)
                if kind == "mfma":
                    C = set(regs(ops[3])) if len(ops) > 3 else set()
                    AB = set(regs(ops[1])) | set(regs(ops[2]))
                    if D & AB: need(nd, "MFMA D -> MFMA A/B")
                    if D & C and (D != C or op != op2): need({8: 10, 4: 6}[passes], "MFMA D -> overlapped C")
                elif kind in ("valu", "trans", "perm", "vmemst", "ds", "vmem", "vmemlds"):
                    if D & (R | Wn): need(nd, "MFMA D -> VALU/mem")
                C2 = set(r2[-(len(w2)):]) if w2 else set()
                if kind in ("valu", "trans", "perm") and (C2 & Wn) and not (D & Wn): need({8: 7, 4: 3}[passes], "MFMA C WAR")
            if k2 == "vmemst" and ("x4" in op2 or "x3" in op2):
                if kind in ("valu", "trans", "perm") and set(r2) & Wn & {x for x in r2 if x[0] in "va"}:
                    need(2, "store data WAR")
            if k2 == "salu" and ("m0", 0) in W2 and kind == "vmemlds": need(1, "M0 -> LDS DMA")
            dist += (n2 if k2 == "nop" else 1)
            if dist > 24: break
        n = 1
        if kind == "nop": n = int(ops[0], 0) + 1
        hist.append((kind, op, w, r, n, ln))
        if len(hist) > 64: hist = hist[-40:]
    if verbose:
        for p_ in probs: print("HAZARD:", p_)
    return probs
```

```python
import sys
from asmlib import Asm, vr, ar, sr, check_hazards

X1, X2, X3 = 0x0, 0x200000, 0x400000
V   = 0x600000
GT  = 0xA00000
WF  = 0xC00000
WD  = 0x1000000
H   = 0x1200000
CSP = 0x1900000
CSF = 0x1920000
ST  = 0x1940000
ST2 = 0x1980000
XSZ = 0x200000
KA_X0, KA_HRE, KA_HIM, KA_WG, KA_WU, KA_WDN, KA_OUT, KA_DBG, KA_WS = 0, 24, 32, 48, 56, 64, 72, 80, 88
SRD3 = 0x00020000

class VM:
    def __init__(self, a): self.a = a; self.n = 0
    def issue(self, text):
        self.a(text); self.n += 1; return self.n
    def wait(self, opid):
        k = self.n - opid
        assert 0 <= k <= 63, k
        self.a(f"s_waitcnt vmcnt({k})")

def srd(a, d, base_lo, base_hi, off, size):
    if isinstance(off, int) and off == 0:
        a(f"s_mov_b32 s{d}, s{base_lo}"); a(f"s_mov_b32 s{d+1}, s{base_hi}")
    else:
        a(f"s_add_u32 s{d}, s{base_lo}, {off if not isinstance(off,int) else hex(off)}")
        a(f"s_addc_u32 s{d+1}, s{base_hi}, 0")
    a(f"s_mov_b32 s{d+2}, {size if not isinstance(size,int) else hex(size)}")
    a(f"s_mov_b32 s{d+3}, {hex(SRD3)}")

def wave_lane(a, sw):
    a("v_lshrrev_b32 v1, 6, v0")
    a("v_and_b32 v0, 63, v0")
    a(f"v_readfirstlane_b32 s{sw}, v1")

def token_of_c(a, vdst, vc, vtmp):
    a(f"v_lshrrev_b32 {vtmp}, 4, {vc}")
    a(f"v_lshlrev_b32 {vtmp}, 2, {vtmp}")
    a(f"v_and_b32 {vdst}, 3, {vc}")
    a(f"v_add_u32 {vdst}, {vdst}, {vtmp}")
    a(f"v_lshlrev_b32 {vdst}, 8, {vdst}")
    a(f"v_bfe_u32 {vtmp}, {vc}, 2, 2")
    a(f"v_lshl_add_u32 {vdst}, {vtmp}, 3, {vdst}")

def gen_T1(a, name, depth):
    RING = depth * 16384
    vL16, vA, vB, vAc, vBc = "v2", "v3", "v4", "v5", "v6"
    vR0, vR1, vO0, vO1, vS = "v7", "v8", "v9", "v10", "v11"
    X, Y, ACC, RES = 16, 48, 80, 96
    a.label(name)
    a(f"s_load_dwordx2 s[4:5], s[0:1], {KA_WS}")
    a(f"s_load_dwordx2 s[6:7], s[0:1], {KA_X0}")
    a(f"s_load_dwordx2 s[8:9], s[0:1], {KA_OUT}")
    wave_lane(a, 10)
    a("s_and_b32 s11, s2, 7")
    a("s_lshr_b32 s12, s2, 3")
    a("s_and_b32 s13, s12, 7")
    a("s_lshr_b32 s14, s12, 3")
    a(f"v_lshlrev_b32 {vL16}, 4, v0")
    a("s_mul_i32 s15, s41, s11")
    a("s_lshl_b32 s36, s13, 1")
    a("s_add_u32 s15, s15, s36")
    a("s_add_u32 s15, s15, s10")
    a("s_lshl_b32 s37, s11, 3")
    a("s_lshl_b32 s38, s14, 1")
    a("s_add_u32 s37, s37, s38")
    a("s_add_u32 s38, s37, s10")
    a("s_sub_u32 s38, s38, 2")
    a("s_cmp_lt_u32 s10, 2")
    a("s_cselect_b32 s15, s15, s38")
    a("s_cselect_b32 s38, s40, s42")
    a("s_lshl_b32 s39, s43, 12")
    a("s_mul_i32 s15, s15, s39")
    a("s_add_u32 s38, s38, s15")
    a("s_and_b32 s50, s10, 1")
    a("s_lshr_b32 s51, s10, 1")
    a("s_add_u32 s52, s36, s50")
    a("s_add_u32 s53, s37, s51")
    a("s_lshl_b32 s54, s50, 12")
    a(f"v_add_u32 {vA}, s54, {vL16}")
    a("s_lshl_b32 s54, s51, 12")
    a("s_add_u32 s54, s54, 8192")
    a(f"v_add_u32 {vB}, s54, {vL16}")
    a("s_lshl_b32 s54, s53, 15")
    a("s_lshl_b32 s55, s52, 11")
    a("s_add_u32 s54, s54, s55")
    a(f"v_add_u32 v12, s54, {vL16}")
    a("v_and_b32 v13, 31, v0")
    token_of_c(a, "v14", "v13", "v15")
    a("s_and_b32 s55, s53, 7")
    a("s_lshl_b32 s55, s55, 5")
    a("s_add_u32 s55, s55, s11")
    a("v_add_u32 v14, s55, v14")
    a("v_lshlrev_b32 v14, 10, v14")
    a("v_lshrrev_b32 v15, 5, v0")
    a("v_lshl_add_u32 v14, v15, 4, v14")
    a("s_lshl_b32 s55, s52, 6")
    a("v_add_u32 v14, s55, v14")
    a("s_cmp_eq_u32 s44, 0")
    a("s_cselect_b64 vcc, -1, 0")
    a("s_cselect_b32 s56, 1024, 32")
    a(f"v_cndmask_b32 {vR0}, v14, v12, vcc")
    a(f"v_add_u32 {vR1}, s56, {vR0}")
    a("s_cmp_eq_u32 s46, 0")
    a("s_cselect_b64 vcc, -1, 0")
    a("s_cselect_b32 s56, 1024, 32")
    a(f"v_cndmask_b32 {vO0}, v14, v12, vcc")
    a(f"v_add_u32 {vO1}, s56, {vO0}")
    a("s_lshl_b32 s54, s53, 12")
    a("s_lshl_b32 s55, s52, 8")
    a("s_add_u32 s54, s54, s55")
    a(f"v_lshlrev_b32 {vS}, 3, v13")
    a(f"v_add_u32 {vS}, s54, {vS}")
    a("s_waitcnt lgkmcnt(0)")
    srd(a, 16, 4, 5, "s38", "s39")
    a("s_add_u32 s20, s4, s45"); a("s_addc_u32 s21, s5, 0")
    a("s_cmp_eq_u32 s44, 0")
    a("s_cselect_b32 s20, s20, s6"); a("s_cselect_b32 s21, s21, s7")
    a(f"s_mov_b32 s22, {hex(XSZ)}"); a(f"s_mov_b32 s23, {hex(SRD3)}")
    a(f"buffer_load_dwordx4 {vr(RES,4)}, {vR0}, s[20:23], 0 offen")
    a(f"buffer_load_dwordx4 {vr(RES+4,4)}, {vR1}, s[20:23], 0 offen")
    a("s_lshl_b32 s33, s10, 12")
    a("s_mov_b32 s32, 0")
    def dma_stage():
        a("s_mov_b32 m0, s33")
        a(f"s_add_u32 s33, s33, 16384")
        for i in range(4):
            a(f"buffer_load_dwordx4 {vL16}, s[16:19], s32 offen offset:{i*1024} lds")
        a("s_add_u32 s32, s32, 4096")
        a(f"s_cmp_ge_u32 s33, {RING}")
        a(f"s_cselect_b32 s57, {RING}, 0")
        a("s_sub_u32 s33, s33, s57")
    for s in range(depth - 1): dma_stage()
    a("s_add_u32 s24, s4, s47"); a("s_addc_u32 s25, s5, 0")
    a("s_cmp_eq_u32 s46, 0")
    a("s_cselect_b32 s24, s24, s8"); a("s_cselect_b32 s25, s25, s9")
    a(f"s_mov_b32 s26, {hex(XSZ)}"); a(f"s_mov_b32 s27, {hex(SRD3)}")
    srd(a, 28, 4, 5, "s48", 0x40000)
    for i in range(16): a(f"v_mov_b32 v{ACC+i}, 0")
    for i in range(32): a(f"v_mov_b32 v{Y+i}, 0")
    a("s_mov_b32 s35, 0")
    a("s_lshr_b32 s34, s43, 1")
    def stage(R, M):
        a(f"s_waitcnt vmcnt({(depth-2)*4})")
        a("s_barrier")
        dma_stage()
        a(f"v_add_u32 {vAc}, s35, {vA}")
        a(f"v_add_u32 {vBc}, s35, {vB}")
        a("s_add_u32 s35, s35, 16384")
        a(f"s_cmp_ge_u32 s35, {RING}")
        a(f"s_cselect_b32 s57, {RING}, 0")
        a("s_sub_u32 s35, s35, s57")
        for k in range(4):
            a(f"ds_read_b128 {vr(R+4*k,4)}, {vAc} offset:{k*1024}")
            a(f"ds_read_b128 {vr(R+16+4*k,4)}, {vBc} offset:{k*1024}")
        for k in range(4):
            a(f"v_mfma_f32_32x32x16_bf16 {vr(ACC,16)}, {vr(M+4*k,4)}, {vr(M+16+4*k,4)}, {vr(ACC,16)}")
        a("s_waitcnt lgkmcnt(0)")
    a.label(name + "_loop")
    stage(X, Y)
    stage(Y, X)
    a("s_sub_u32 s34, s34, 1")
    a("s_cmp_lg_u32 s34, 0")
    a(f"s_cbranch_scc1 {name}_loop")
    for k in range(4):
        a(f"v_mfma_f32_32x32x16_bf16 {vr(ACC,16)}, {vr(Y+4*k,4)}, {vr(Y+16+4*k,4)}, {vr(ACC,16)}")
    a(f"v_permlane32_swap_b32 v{RES}, v{RES+2}")
    a(f"v_permlane32_swap_b32 v{RES+1}, v{RES+3}")
    a(f"v_permlane32_swap_b32 v{RES+4}, v{RES+6}")
    a(f"v_permlane32_swap_b32 v{RES+5}, v{RES+7}")
    U = X
    for i in range(8):
        a(f"v_lshlrev_b32 v{U+2*i}, 16, v{RES+i}")
        a(f"v_and_b32 v{U+2*i+1}, 0xffff0000, v{RES+i}")
    a.nop(2)
    for i in range(8):
        a(f"v_pk_add_f32 {vr(ACC+2*i,2)}, {vr(ACC+2*i,2)}, {vr(U+2*i,2)}")
    P = 32
    for i in range(8):
        a(f"v_cvt_pk_bf16_f32 v{P+i}, v{ACC+2*i}, v{ACC+2*i+1}")
    Sx, Qx = 40, 42
    a(f"v_pk_add_f32 {vr(Sx,2)}, {vr(ACC,2)}, {vr(ACC+2,2)}")
    a(f"v_pk_mul_f32 {vr(Qx,2)}, {vr(ACC,2)}, {vr(ACC,2)}")
    a(f"v_permlane32_swap_b32 v{P}, v{P+2}")
    a(f"v_permlane32_swap_b32 v{P+1}, v{P+3}")
    a(f"v_permlane32_swap_b32 v{P+4}, v{P+6}")
    a(f"v_permlane32_swap_b32 v{P+5}, v{P+7}")
    a(f"v_pk_fma_f32 {vr(Qx,2)}, {vr(ACC+2,2)}, {vr(ACC+2,2)}, {vr(Qx,2)}")
    a(f"buffer_store_dwordx4 {vr(P,4)}, {vO0}, s[24:27], 0 offen")
    a(f"buffer_store_dwordx4 {vr(P+4,4)}, {vO1}, s[24:27], 0 offen")
    a("s_cmp_eq_u32 s49, 0")
    a(f"s_cbranch_scc1 {name}_end")
    for i in range(2, 8):
        a(f"v_pk_add_f32 {vr(Sx,2)}, {vr(Sx,2)}, {vr(ACC+2*i,2)}")
        a(f"v_pk_fma_f32 {vr(Qx,2)}, {vr(ACC+2*i,2)}, {vr(ACC+2*i,2)}, {vr(Qx,2)}")
    a(f"v_add_f32 v44, v{Sx}, v{Sx+1}")
    a(f"v_add_f32 v45, v{Qx}, v{Qx+1}")
    a(f"v_mov_b32 v46, v44")
    a(f"v_mov_b32 v47, v45")
    a.nop(2)
    a("v_permlane32_swap_b32 v44, v46")
    a("v_permlane32_swap_b32 v45, v47")
    a.nop(1)
    a("v_add_f32 v44, v44, v46")
    a("v_add_f32 v45, v45, v47")
    a("v_cmp_gt_u32 vcc, 32, v0")
    a("s_and_saveexec_b64 s[58:59], vcc")
    a(f"buffer_store_dwordx2 v[44:45], {vS}, s[28:31], 0 offen")
    a.label(name + "_end")
    a("s_endpgm")

def t1_stub(a, kname, body, ngrid, Aoff, rmul, Boff, nst, resmode, resoff, outmode, outoff, stoff, stflag, extra=None):
    kernel_head(a, kname)
    if extra is None:
        a(f"s_cmp_ge_u32 s2, {ngrid}")
        a(f"s_cbranch_scc1 {kname}_exit")
    else:
        extra(a, kname)
    for reg, val in ((40, Aoff), (41, rmul), (42, Boff), (43, nst), (44, resmode), (45, resoff), (46, outmode), (47, outoff), (48, stoff), (49, stflag)):
        a(f"s_mov_b32 s{reg}, {hex(val)}")
    a(f"s_branch {body}")
    a.label(kname + "_exit")
    a("s_endpgm")

def kernel_head(a, name):
    a.raw(f".globl {name}")
    a.raw(".p2align 8")
    a.raw(f".type {name},@function")
    a.raw(f"{name}:")

def kernel_desc(name, vgpr, accum, sgpr=96):
    return f""".p2align 6
.amdhsa_kernel {name}
  .amdhsa_next_free_vgpr {vgpr}
  .amdhsa_next_free_sgpr {sgpr}
  .amdhsa_accum_offset {accum}
  .amdhsa_group_segment_fixed_size 0
  .amdhsa_kernarg_size 96
  .amdhsa_user_sgpr_count 2
  .amdhsa_user_sgpr_kernarg_segment_ptr 1
  .amdhsa_system_sgpr_workgroup_id_x 1
  .amdhsa_float_denorm_mode_32 3
  .amdhsa_float_denorm_mode_16_64 3
.end_amdhsa_kernel
"""

def gen_T2(a, name, rm, depth, xoff, stoff):
    NST = 8
    RING = depth * 16384
    STATS = 65536 if rm else RING
    vD = [2, 3, 4, 5]
    vAa = {(0,0,0):6,(0,0,1):7,(0,1,0):8,(0,1,1):9,(1,0,0):10,(1,0,1):11,(1,1,0):12,(1,1,1):13}
    vBa = {(0,0):14,(0,1):15,(1,0):16,(1,1):17}
    X, Y = 20, 52
    C0, C1, S0, S1 = 84, 88, 92, 96
    SA = 100
    RS = 104
    T = 112
    vm = VM(a)
    a.label(name)
    a(f"s_load_dwordx2 s[4:5], s[0:1], {KA_WS}")
    a(f"s_load_dwordx2 s[6:7], s[0:1], {KA_X0}")
    a(f"s_load_dwordx4 s[60:63], s[0:1], {KA_HRE}")
    wave_lane(a, 10)
    a("s_and_b32 s11, s2, 7")
    a("s_lshr_b32 s12, s2, 3")
    a("s_and_b32 s13, s12, 7")
    a("s_lshr_b32 s14, s12, 3")
    a("s_and_b32 s50, s10, 1")
    a("s_lshr_b32 s51, s10, 1")
    a("v_and_b32 v112, 15, v0")
    a("v_lshrrev_b32 v113, 4, v0")
    a("v_lshrrev_b32 v114, 1, v112")
    a("s_lshl_b32 s52, s51, 2")
    a("v_add_u32 v115, s52, v113")
    a("v_xor_b32 v116, v115, v114")
    a("v_lshlrev_b32 v116, 4, v116")
    a("v_lshl_add_u32 v116, v112, 7, v116")
    a("v_xor_b32 v117, 64, v116")
    a("s_lshl_b32 s53, s51, 12")
    a("s_add_u32 s53, s53, 8192")
    a(f"v_add_u32 v{vBa[(0,0)]}, s53, v116")
    a(f"v_add_u32 v{vBa[(0,1)]}, s53, v117")
    a("s_lshl_b32 s53, s50, 12")
    if rm:
        for sub in range(2):
            a(f"s_add_u32 s54, s53, {sub*2048}")
            a(f"v_add_u32 v{vAa[(0,sub,0)]}, s54, v116")
            a(f"v_add_u32 v{vAa[(0,sub,1)]}, s54, v117")
    else:
        a("v_lshlrev_b32 v118, 9, v115")
        a("v_lshl_add_u32 v118, v112, 4, v118")
        a("v_xor_b32 v119, 2048, v118")
        for sub in range(2):
            a(f"s_add_u32 s54, s53, {sub*256}")
            a(f"v_add_u32 v{vAa[(0,sub,0)]}, s54, v118")
            a(f"v_add_u32 v{vAa[(0,sub,1)]}, s54, v119")
    if depth > 4:
        for k, r_ in vAa.items():
            if k[0] == 1: a(f"v_add_u32 v{r_}, 0x10000, v{vAa[(0,)+k[1:]]}")
        for k, r_ in vBa.items():
            if k[0] == 1: a(f"v_add_u32 v{r_}, 0x10000, v{vBa[(0,k[1])]}")
    a("v_lshrrev_b32 v118, 3, v0")
    a("v_and_b32 v119, 7, v0")
    a("s_cmp_lt_u32 s10, 2")
    a(f"s_cbranch_scc0 {name}_dmaB")
    a("s_lshl_b32 s54, s14, 1")
    a("s_add_u32 s54, s54, s10")
    if rm:
        a("s_lshl_b32 s55, s54, 5")
        a("s_add_u32 s55, s55, s11")
        for i in range(4):
            a(f"v_add_u32 v120, {8*i}, v118")
            token_of_c(a, "v121", "v120", "v122")
            a("v_add_u32 v121, s55, v121")
            a("v_bfe_u32 v122, v120, 1, 3")
            a("v_xor_b32 v122, v122, v119")
            a("v_lshlrev_b32 v122, 4, v122")
            a(f"v_lshl_add_u32 v{vD[i]}, v121, 10, v122")
        a("s_mov_b32 s56, 128")
        a("s_waitcnt lgkmcnt(0)")
        srd(a, 16, 6, 7, 0, XSZ)
        srd(a, 20, 6, 7, 0, XSZ)
    else:
        for i in range(4):
            a(f"v_lshlrev_b32 v{vD[i]}, 4, v0")
            if i: a(f"v_add_u32 v{vD[i]}, {i*1024}, v{vD[i]}")
        a("s_lshl_b32 s55, s11, 3")
        a("s_add_u32 s55, s55, s54")
        a("s_lshl_b32 s55, s55, 15")
        a(f"s_add_u32 s55, s55, {hex(xoff)}")
        a("s_mov_b32 s56, 4096")
        a("s_waitcnt lgkmcnt(0)")
        srd(a, 16, 4, 5, "s55", 32768)
        srd(a, 20, 4, 5, "s55", 32768)
    a(f"s_branch {name}_dmaDone")
    a.label(name + "_dmaB")
    a("s_lshl_b32 s54, s13, 5")
    a("s_sub_u32 s55, s10, 2")
    a("s_lshl_b32 s55, s55, 4")
    a("s_add_u32 s54, s54, s55")
    for i in range(4):
        a(f"v_add_u32 v120, {8*(i&1)}, v118")
        a("v_lshrrev_b32 v122, 1, v120")
        a("v_xor_b32 v122, v122, v119")
        a("v_lshlrev_b32 v122, 4, v122")
        a("v_add_u32 v120, s54, v120")
        if i < 2:
            a("v_cmp_eq_u32 vcc, 0, v120")
            a("v_mov_b32 v121, 0x100")
            a.nop(1)
            a("v_cndmask_b32 v120, v120, v121, vcc")
        a(f"v_lshl_add_u32 v{vD[i]}, v120, 10, v122")
    a("s_mov_b32 s56, 128")
    a("s_waitcnt lgkmcnt(0)")
    srd(a, 16, 60, 61, 0, 0x80000)
    srd(a, 20, 62, 63, 0, 0x80000)
    a.label(name + "_dmaDone")
    if not rm:
        a("s_lshl_b32 s54, s11, 3")
        a("s_lshl_b32 s55, s14, 1")
        a("s_add_u32 s54, s54, s55")
        a("s_add_u32 s54, s54, s50")
        a("s_lshl_b32 s54, s54, 12")
        a("s_lshl_b32 s55, s51, 11")
        a("s_add_u32 s54, s54, s55")
        a("v_and_b32 v120, 31, v0")
        a("v_lshrrev_b32 v121, 5, v0")
        a("v_lshlrev_b32 v121, 10, v121")
        a("v_lshl_add_u32 v121, v120, 3, v121")
        a("v_add_u32 v121, s54, v121")
        srd(a, 24, 4, 5, stoff, 0x40000)
        st_ids = [vm.issue(f"buffer_load_dwordx2 {vr(T+16+2*k,2)}, v121, s[24:27], 0 offen offset:{k*256}") for k in range(4)]
    a("s_lshl_b32 s33, s10, 12")
    ids = {}
    def dma(s):
        slot = s % depth
        for i in range(4):
            a(f"s_add_u32 m0, s33, {slot*16384 + i*1024}")
            S = "s[16:19]" if i < 2 else "s[20:23]"
            if i == 0:
                a(f"s_mul_i32 s32, s56, {s}")
            else:
                a("s_nop 0")
            ids[s] = vm.issue(f"buffer_load_dwordx4 v{vD[i]}, {S}, s32 offen lds")
    npro = min(depth - 1, NST) if depth < NST else NST
    for s in range(npro): dma(s)
    srd(a, 28, 4, 5, V, 0x400000)
    a("s_lshl_b32 s54, s13, 5")
    a("s_lshl_b32 s55, s51, 4")
    a("s_add_u32 s54, s54, s55")
    a("v_add_u32 v120, s54, v112")
    a("v_cmp_eq_u32 s[64:65], 0, v120")
    a("v_sub_u32 v121, 0x200, v120")
    a("v_mov_b32 v122, 0x100")
    a("v_cndmask_b32 v123, v120, v122, s[64:65]")
    a("v_mov_b32 v122, 0")
    a("v_cndmask_b32 v124, v121, v122, s[64:65]")
    a("s_lshl_b32 s54, s11, 2")
    a("s_add_u32 s54, s54, s14")
    a("s_lshl_b32 s54, s54, 10")
    a("s_lshl_b32 s55, s50, 9")
    a("s_add_u32 s54, s54, s55")
    a("v_lshlrev_b32 v122, 2, v113")
    a("v_add_u32 v122, s54, v122")
    vDir, vMir = 18, 19
    for src, dst in ((123, vDir), (124, vMir)):
        a(f"v_lshrrev_b32 v125, 5, v{src}")
        a("v_lshlrev_b32 v125, 15, v125")
        a(f"v_and_b32 v126, 31, v{src}")
        a("v_lshl_add_u32 v125, v126, 4, v125")
        a(f"v_add_u32 v{dst}, v125, v122")
    for r in range(8): a(f"s_mov_b32 s{66+r}, {hex(r*0x80000)}")
    for i in range(16): a(f"v_mov_b32 v{C0+i}, 0")
    for i in range(4): a(f"v_mov_b32 v{SA+i}, 0")
    a(f"s_mov_b32 s74, 0x3f803f80")
    a("s_lshl_b32 s54, s50, 9")
    a(f"s_add_u32 s54, s54, {STATS}")
    a("v_and_b32 v120, 31, v0")
    a("s_lshl_b32 s55, s51, 3")
    a("s_add_u32 s55, s55, s54")
    a("v_lshlrev_b32 v127, 4, v120")
    a("v_add_u32 v127, s55, v127")
    a("v_lshlrev_b32 v126, 6, v113")
    a("v_add_u32 v126, s54, v126")
    vSW, vSR = 127, 126
    def rstd_from_lds():
        for sub in range(2):
            for i in range(4):
                a(f"ds_read_b128 {vr(T+32+16*sub+4*i,4)}, v{vSR} offset:{sub*256+i*16}")
        a("s_waitcnt lgkmcnt(0)")
        a(f"s_mov_b32 s76, {hex(0x3b000000)}")
        a(f"s_mov_b32 s77, {hex(0x3b000000)}")
        for k in range(8):
            b = T + 32 + 4*k
            a(f"v_pk_add_f32 {vr(b,2)}, {vr(b,2)}, {vr(b+2,2)}")
        for k in range(8):
            b = T + 32 + 4*k
            a(f"v_pk_mul_f32 {vr(b,2)}, {vr(b,2)}, s[76:77]")
        for k in range(8):
            b = T + 32 + 4*k
            a(f"v_fma_f32 v{b+1}, -v{b}, v{b}, v{b+1}")
        for k in range(8):
            b = T + 32 + 4*k
            a(f"v_add_f32 v{b+1}, 0x3727c5ac, v{b+1}")
        for k in range(8):
            b = T + 32 + 4*k
            a(f"v_rsq_f32 v{RS+k}, v{b+1}")
    if rm:
        a("s_lshr_b32 s54, s2, 2")
        a("s_and_b32 s55, s54, 7")
        a("s_lshl_b32 s55, s55, 5")
        a("s_lshr_b32 s57, s54, 3")
        a("s_add_u32 s55, s55, s57")
        a("v_and_b32 v24, 31, v0")
        token_of_c(a, "v20", "v24", "v25")
        a("v_add_u32 v20, s55, v20")
        a("v_lshrrev_b32 v21, 5, v0")
        a("v_lshlrev_b32 v21, 5, v21")
        srd(a, 24, 4, 5, GT, 0x200000)
        a("s_and_b32 s57, s2, 3")
        a("s_lshl_b32 s57, s57, 3")
        a("s_lshl_b32 s58, s10, 1")
        a("s_add_u32 s57, s57, s58")
        a("s_lshl_b32 s58, s54, 15")
        a("v_lshlrev_b32 v22, 4, v0")
        a("v_add_u32 v22, s58, v22")
        a(f"s_mov_b32 s75, {hex(0x3a000000)}")
        for x in range(2):
            a(f"s_add_u32 s59, s57, {x}")
            a("s_and_b32 s78, s59, 3")
            a("s_lshl_b32 s78, s78, 6")
            a("s_lshr_b32 s79, s59, 2")
            a("s_add_u32 s78, s78, s79")
            a("v_add_u32 v23, s78, v21")
            for q in range(4):
                a(f"v_add_u32 v24, {8*q}, v23")
                a("v_mul_u32_u24 v24, v24, v20")
                a("v_and_b32 v24, 0x7ff, v24")
                a("v_cvt_f32_u32 v24, v24")
                a("v_mul_f32 v24, s75, v24")
                a(f"v_cos_f32 v{26+2*q}, v24")
                a(f"v_sin_f32 v{26+2*q+1}, v24")
            a.nop(1)
            for q in range(4):
                a(f"v_cvt_pk_bf16_f32 v{36+4*x+q}, v{26+2*q}, v{26+2*q+1}")
            a("s_lshl_b32 s59, s59, 10")
            vm.issue(f"buffer_store_dwordx4 {vr(36+4*x,4)}, v22, s[24:27], s59 offen")
    else:
        vm.wait(st_ids[-1])
        b = T + 16
        a(f"v_pk_add_f32 {vr(b,2)}, {vr(b,2)}, {vr(b+2,2)}")
        a(f"v_pk_add_f32 {vr(b+4,2)}, {vr(b+4,2)}, {vr(b+6,2)}")
        a(f"v_pk_add_f32 {vr(b,2)}, {vr(b,2)}, {vr(b+4,2)}")
        a(f"v_mov_b32 v{b+2}, v{b}")
        a(f"v_mov_b32 v{b+3}, v{b+1}")
        a.nop(2)
        a(f"v_permlane32_swap_b32 v{b}, v{b+2}")
        a(f"v_permlane32_swap_b32 v{b+1}, v{b+3}")
        a.nop(1)
        a(f"v_pk_add_f32 {vr(b,2)}, {vr(b,2)}, {vr(b+2,2)}")
        a("v_cmp_gt_u32 vcc, 32, v0")
        a("s_and_saveexec_b64 s[58:59], vcc")
        a(f"ds_write_b64 v{vSW}, {vr(b,2)}")
        a("s_mov_b64 exec, s[58:59]")
        a("s_waitcnt lgkmcnt(0)")
    def reads(s, R):
        slot = s % depth
        hi = 1 if slot >= 4 else 0
        off = (slot - 4*hi) * 16384
        for kk in range(2):
            for sub in range(2):
                a(f"ds_read_b128 {vr(R+8*kk+4*sub,4)}, v{vAa[(hi,sub,kk)]} offset:{off}")
            for cs in range(2):
                a(f"ds_read_b128 {vr(R+16+8*kk+4*cs,4)}, v{vBa[(hi,kk)]} offset:{off+cs*2048}")
    def mfmas(M):
        for kk in range(2):
            for cs in range(2):
                for sub in range(2):
                    acc = (C0, C1)[sub] if cs == 0 else (S0, S1)[sub]
                    a(f"v_mfma_f32_16x16x32_bf16 {vr(acc,4)}, {vr(M+8*kk+4*sub,4)}, {vr(M+16+8*kk+4*cs,4)}, {vr(acc,4)}")
        if rm:
            for sub in range(2):
                for i in range(4):
                    a(f"v_dot2_f32_bf16 v{SA+2*sub}, v{M+4*sub+i}, s74, v{SA+2*sub}")
                    a(f"v_dot2_f32_bf16 v{SA+2*sub+1}, v{M+4*sub+i}, v{M+4*sub+i}, v{SA+2*sub+1}")
    sets = [X, Y]
    for s in range(NST):
        vm.wait(ids[s])
        a("s_barrier")
        if s + depth - 1 < NST and (s + depth - 1) not in ids: dma(s + depth - 1)
        reads(s, sets[s & 1])
        if s == 0 and not rm:
            pass
        if s >= 1: mfmas(sets[(s - 1) & 1])
        if s == 0 and not rm:
            rstd_from_lds()
        a("s_waitcnt lgkmcnt(0)")
    mfmas(sets[(NST - 1) & 1])
    if rm:
        a.nop(3)
        for k in range(4): a(f"v_mov_b32 v{T+k}, v{SA+k}")
        a.nop(2)
        for k in range(4): a(f"v_permlane16_swap_b32 v{SA+k}, v{T+k}")
        a.nop(1)
        for k in range(4): a(f"v_add_f32 v{SA+k}, v{SA+k}, v{T+k}")
        for k in range(4): a(f"v_mov_b32 v{T+k}, v{SA+k}")
        a.nop(2)
        for k in range(4): a(f"v_permlane32_swap_b32 v{SA+k}, v{T+k}")
        a.nop(1)
        for k in range(4): a(f"v_add_f32 v{SA+k}, v{SA+k}, v{T+k}")
        a("v_cmp_gt_u32 vcc, 16, v0")
        a.nop(2)
        a(f"v_cndmask_b32 v{T}, v{SA+2}, v{SA}, vcc")
        a(f"v_cndmask_b32 v{T+1}, v{SA+3}, v{SA+1}, vcc")
        a("v_cmp_gt_u32 vcc, 32, v0")
        a("s_and_saveexec_b64 s[58:59], vcc")
        a(f"ds_write_b64 v{vSW}, {vr(T,2)}")
        a("s_mov_b64 exec, s[58:59]")
        a("s_waitcnt lgkmcnt(0)")
        a("s_barrier")
        rstd_from_lds()
    else:
        a.nop(8)
    a.nop(1)
    for acc, rs in ((C0, RS), (C1, RS+4), (S0, RS), (S1, RS+4)):
        a(f"v_pk_mul_f32 {vr(acc,2)}, {vr(acc,2)}, {vr(rs,2)}")
        a(f"v_pk_mul_f32 {vr(acc+2,2)}, {vr(acc+2,2)}, {vr(rs+2,2)}")
    AR, AI, DR, DI = 20, 24, 28, 32
    NEG = "neg_lo:[0,1] neg_hi:[0,1]"
    for h in (0, 2):
        a(f"v_pk_add_f32 {vr(AR+h,2)}, {vr(C0+h,2)}, {vr(C1+h,2)}")
        a(f"v_pk_add_f32 {vr(DR+h,2)}, {vr(C0+h,2)}, {vr(C1+h,2)} {NEG}")
        a(f"v_pk_add_f32 {vr(AI+h,2)}, {vr(S0+h,2)}, {vr(S1+h,2)}")
        a(f"v_pk_add_f32 {vr(DI+h,2)}, {vr(S0+h,2)}, {vr(S1+h,2)} {NEG}")
    ER, EI, FR, FI = 36, 38, 40, 42
    a(f"v_pk_add_f32 {vr(ER,2)}, {vr(AR,2)}, {vr(AR+2,2)}")
    a(f"v_pk_add_f32 {vr(EI,2)}, {vr(AI,2)}, {vr(AI+2,2)}")
    a(f"v_pk_add_f32 {vr(FR,2)}, {vr(AR,2)}, {vr(AR+2,2)} {NEG}")
    a(f"v_pk_add_f32 {vr(FI,2)}, {vr(AI,2)}, {vr(AI+2,2)} {NEG}")
    UR, UI = 52, 60
    a(f"v_add_f32 v{UR+0}, v{ER}, v{ER+1}");  a(f"v_add_f32 v{UI+0}, v{EI}, v{EI+1}")
    a(f"v_sub_f32 v{UR+4}, v{ER}, v{ER+1}");  a(f"v_sub_f32 v{UI+4}, v{EI}, v{EI+1}")
    a(f"v_add_f32 v{UR+2}, v{FR}, v{FI+1}");  a(f"v_sub_f32 v{UI+2}, v{FI}, v{FR+1}")
    a(f"v_sub_f32 v{UR+6}, v{FR}, v{FI+1}");  a(f"v_add_f32 v{UI+6}, v{FI}, v{FR+1}")
    g0r, g0i, h0r, h0i = 44, 45, 46, 47
    p, q, p2, q2 = 48, 49, 50, 51
    t1, t2, t3, t4 = 68, 69, 70, 71
    a(f"v_add_f32 v{g0r}, v{DR}, v{DI+2}");   a(f"v_sub_f32 v{g0i}, v{DI}, v{DR+2}")
    a(f"v_sub_f32 v{h0r}, v{DR}, v{DI+2}");   a(f"v_add_f32 v{h0i}, v{DI}, v{DR+2}")
    a(f"v_sub_f32 v{p}, v{DR+1}, v{DR+3}");   a(f"v_add_f32 v{q}, v{DI+1}, v{DI+3}")
    a(f"v_add_f32 v{p2}, v{DR+1}, v{DR+3}");  a(f"v_sub_f32 v{q2}, v{DI+1}, v{DI+3}")
    a(f"v_add_f32 v{t1}, v{p}, v{q}");        a(f"v_sub_f32 v{t2}, v{q2}, v{p2}")
    a(f"v_add_f32 v{t3}, v{p2}, v{q2}");      a(f"v_sub_f32 v{t4}, v{q}, v{p}")
    a(f"s_mov_b32 s75, {hex(0x3f3504f3)}")
    a(f"v_fma_f32 v{UR+1}, s75, v{t1}, v{g0r}");   a(f"v_fma_f32 v{UR+5}, -s75, v{t1}, v{g0r}")
    a(f"v_fma_f32 v{UI+1}, s75, v{t2}, v{g0i}");   a(f"v_fma_f32 v{UI+5}, -s75, v{t2}, v{g0i}")
    a(f"v_fma_f32 v{UR+3}, s75, v{t4}, v{h0r}");   a(f"v_fma_f32 v{UR+7}, -s75, v{t4}, v{h0r}")
    a(f"v_fma_f32 v{UI+3}, -s75, v{t3}, v{h0i}");  a(f"v_fma_f32 v{UI+7}, s75, v{t3}, v{h0i}")
    DD, MM = 72, 80
    for r in range(8): a(f"v_cvt_pk_bf16_f32 v{DD+r}, v{UR+r}, v{UI+r}")
    a("v_mov_b32 v68, 0x80000000")
    for r in range(8): a(f"v_xor_b32 v{MM+r}, v68, v{DD+r}")
    for r in range(8):
        a(f"buffer_store_dword v{DD+r}, v{vDir}, s[28:31], s{66+r} offen")
    a("v_mov_b32 v68, 0")
    for r in range(8): a(f"v_cndmask_b32 v{MM+r}, v{MM+r}, v68, s[64:65]")
    for r in range(8):
        a(f"buffer_store_dword v{MM+r}, v{vMir}, s[28:31], s{66+((8-r)&7)} offen")
    a("s_endpgm")

def gen_SWF(a, name):
    a.label(name)
    a(f"s_load_dwordx4 s[4:7], s[0:1], {KA_WG}")
    a(f"s_load_dwordx2 s[8:9], s[0:1], {KA_WS}")
    wave_lane(a, 10)
    a("s_sub_u32 s11, s2, 256")
    a("s_lshr_b32 s12, s11, 3")
    a("s_and_b32 s13, s11, 7")
    a("v_lshrrev_b32 v2, 4, v0")
    a("v_and_b32 v3, 15, v0")
    a("s_lshl_b32 s14, s13, 6")
    a("s_lshl_b32 s15, s10, 4")
    a("s_add_u32 s14, s14, s15")
    a("v_add_u32 v2, s14, v2")
    a("s_movk_i32 s16, 3584")
    a("v_mul_lo_u32 v2, v2, s16")
    a("v_lshl_add_u32 v2, v3, 4, v2")
    a("s_lshl_b32 s15, s12, 8")
    a("v_add_u32 v2, s15, v2")
    a("s_waitcnt lgkmcnt(0)")
    srd(a, 16, 4, 5, 0, 512*3584)
    srd(a, 20, 6, 7, 0, 512*3584)
    a("s_lshl_b32 s33, s10, 12")
    for mat in range(2):
        for i in range(4):
            a(f"s_add_u32 m0, s33, {mat*16384 + i*1024}")
            a(f"s_mov_b32 s32, {i*4*3584}")
            a(f"buffer_load_dwordx4 v2, s[{16+4*mat}:{19+4*mat}], s32 offen lds")
    srd(a, 24, 8, 9, WF, 0x380000)
    srd(a, 28, 8, 9, CSP, 112*8*128)
    a("v_lshrrev_b32 v4, 4, v0")
    a("v_lshrrev_b32 v5, 1, v4")
    a("v_lshlrev_b32 v5, 3, v5")
    a("v_bfe_u32 v6, v0, 2, 2")
    a("v_add_u32 v5, v5, v6")
    a("v_lshlrev_b32 v5, 8, v5")
    a("v_and_b32 v4, 1, v4")
    a("v_lshl_add_u32 v5, v4, 14, v5")
    a("v_and_b32 v6, 3, v0")
    a("v_lshl_add_u32 v5, v6, 3, v5")
    a("s_lshl_b32 s14, s10, 6")
    a("v_add_u32 v5, s14, v5")
    a("v_lshlrev_b32 v7, 4, v0")
    a("v_mov_b32 v8, 0x3f803f80")
    for i in range(1, 4): a(f"v_mov_b32 v{8+i}, 0x3f803f80")
    a("s_waitcnt vmcnt(0)")
    a("s_barrier")
    for x in range(2):
        for ks in range(4):
            R = 16 + 16*x + 4*ks
            a(f"ds_read_b64_tr_b16 {vr(R,2)}, v5 offset:{ks*16*256 + x*32}")
            a(f"ds_read_b64_tr_b16 {vr(R+2,2)}, v5 offset:{ks*16*256 + 4*256 + x*32}")
    a("s_waitcnt lgkmcnt(0)")
    a("s_lshl_b32 s14, s12, 3")
    a("s_lshl_b32 s15, s10, 1")
    a("s_add_u32 s14, s14, s15")
    a("s_lshl_b32 s15, s14, 15")
    a("s_lshl_b32 s34, s13, 12")
    a("s_add_u32 s15, s15, s34")
    for x in range(2):
        for ks in range(4):
            R = 16 + 16*x + 4*ks
            a(f"s_add_u32 s34, s15, {x*32768}")
            a(f"buffer_store_dwordx4 {vr(R,4)}, v7, s[24:27], s34 offen offset:{ks*1024}")
            C = 48 + 16*x
            a(f"v_mfma_f32_32x32x16_bf16 {vr(C,16)}, v[8:11], {vr(R,4)}, {'0' if ks == 0 else vr(C,16)}")
    a.nop(12)
    a("s_lshl_b32 s14, s14, 10")
    a("s_lshl_b32 s15, s13, 7")
    a("s_add_u32 s14, s14, s15")
    a("v_lshlrev_b32 v12, 2, v0")
    a("v_cmp_gt_u32 vcc, 32, v0")
    a("s_and_saveexec_b64 s[58:59], vcc")
    a("buffer_store_dword v48, v12, s[28:31], s14 offen")
    a("s_add_u32 s14, s14, 1024")
    a("buffer_store_dword v64, v12, s[28:31], s14 offen")
    a("s_endpgm")

def gen_SCS(a, name, first):
    a.label(name)
    a(f"s_load_dwordx2 s[8:9], s[0:1], {KA_WS}")
    wave_lane(a, 10)
    a(f"s_sub_u32 s11, s2, {first}")
    a("s_lshl_b32 s11, s11, 2")
    a("s_add_u32 s11, s11, s10")
    a("v_and_b32 v2, 31, v0")
    a("v_lshlrev_b32 v2, 2, v2")
    a("s_lshl_b32 s12, s11, 10")
    a("s_waitcnt lgkmcnt(0)")
    srd(a, 24, 8, 9, CSF, 112*1024)
    srd(a, 28, 8, 9, CSP, 112*8*128)
    for k in range(8):
        a(f"buffer_load_dword v{8+k}, v2, s[28:31], s12 offen offset:{k*128}")
    a("s_waitcnt vmcnt(0)")
    for k in range(1, 8): a(f"v_add_f32 v8, v8, v{8+k}")
    a("v_cvt_pk_bf16_f32 v9, v8, v8")
    a("v_and_b32 v10, 0xffff0000, v9")
    a("v_sub_f32 v11, v8, v10")
    a("v_cvt_pk_bf16_f32 v11, v11, v11")
    a("v_and_b32 v12, 0xffff, v9")
    a("v_lshl_or_b32 v16, v11, 16, v12")
    a("v_mov_b32 v17, v12")
    a("v_mov_b32 v18, 0")
    a("v_mov_b32 v19, 0")
    a("v_cmp_gt_u32 vcc, 32, v0")
    a.nop(2)
    a("v_cndmask_b32 v16, 0, v16, vcc")
    a("v_cndmask_b32 v17, 0, v17, vcc")
    a("v_lshlrev_b32 v3, 4, v0")
    a("buffer_store_dwordx4 v[16:19], v3, s[24:27], s12 offen")
    a("s_endpgm")

def gen_SWD(a, name, first):
    a.label(name)
    a(f"s_load_dwordx2 s[4:5], s[0:1], {KA_WDN}")
    a(f"s_load_dwordx2 s[8:9], s[0:1], {KA_WS}")
    wave_lane(a, 10)
    a(f"s_sub_u32 s11, s2, {first}")
    a("v_lshlrev_b32 v7, 4, v0")
    a("s_lshl_b32 s12, s11, 15")
    a("s_lshl_b32 s13, s10, 13")
    a("s_add_u32 s12, s12, s13")
    a("s_waitcnt lgkmcnt(0)")
    srd(a, 16, 4, 5, 0, 1792*1024)
    for i in range(8):
        a(f"s_add_u32 m0, s13, {i*1024}")
        a(f"s_add_u32 s32, s12, {i*1024}")
        a("buffer_load_dwordx4 v7, s[16:19], s32 offen lds")
    srd(a, 24, 8, 9, WD, 0x1C0000)
    a("v_lshrrev_b32 v4, 4, v0")
    a("v_lshrrev_b32 v5, 1, v4")
    a("v_lshlrev_b32 v5, 3, v5")
    a("v_bfe_u32 v6, v0, 2, 2")
    a("v_add_u32 v5, v5, v6")
    a("v_lshlrev_b32 v5, 10, v5")
    a("v_and_b32 v4, 1, v4")
    a("v_lshl_add_u32 v5, v4, 5, v5")
    a("v_and_b32 v6, 3, v0")
    a("v_lshl_add_u32 v5, v6, 3, v5")
    a("s_lshl_b32 s14, s10, 8")
    a("v_add_u32 v5, s14, v5")
    a("s_waitcnt vmcnt(0)")
    a("s_barrier")
    for x in range(4):
        for ks in range(2):
            R = 16 + 8*x + 4*ks
            a(f"ds_read_b64_tr_b16 {vr(R,2)}, v5 offset:{ks*16*1024 + x*64}")
            a(f"ds_read_b64_tr_b16 {vr(R+2,2)}, v5 offset:{ks*16*1024 + 4*1024 + x*64}")
    a("s_waitcnt lgkmcnt(0)")
    a("s_lshl_b32 s14, s10, 2")
    a("s_mul_i32 s14, s14, 112")
    a("s_lshl_b32 s15, s11, 1")
    a("s_add_u32 s14, s14, s15")
    a("s_lshl_b32 s14, s14, 10")
    for x in range(4):
        for ks in range(2):
            R = 16 + 8*x + 4*ks
            a(f"s_add_u32 s34, s14, {x*112*1024}")
            a(f"buffer_store_dwordx4 {vr(R,4)}, v7, s[24:27], s34 offen offset:{ks*1024}")
    a("s_endpgm")

def gen_K3(a, name):
    vm = VM(a)
    NSLOT = 5
    vL16 = "v2"
    vWb = ["v2", "v3", "v13"]
    NWR = 8
    WR = 16
    CSR = 48
    MB = 76
    ACC = 80
    T = 192
    vQ, vC1 = 4, 5
    a.label(name)
    a(f"s_load_dwordx2 s[4:5], s[0:1], {KA_WS}")
    wave_lane(a, 10)
    a("s_and_b32 s11, s2, 7")
    a("s_lshr_b32 s12, s2, 3")
    a("s_and_b32 s13, s11, 3")
    a("s_lshl_b32 s13, s13, 2")
    a("s_and_b32 s14, s12, 3")
    a("s_add_u32 s13, s13, s14")
    a("s_lshr_b32 s14, s11, 2")
    a("s_lshl_b32 s14, s14, 3")
    a("s_lshr_b32 s15, s12, 2")
    a("s_add_u32 s14, s14, s15")
    a("s_lshl_b32 s14, s14, 2")
    a("s_add_u32 s14, s14, s10")
    a("s_mul_i32 s15, s13, 7")
    a(f"v_lshlrev_b32 {vL16}, 4, v0")
    a("s_lshl_b32 s41, s15, 15")
    a(f"s_add_u32 s41, s41, {hex(WF)}")
    a("s_lshl_b32 s42, s14, 15")
    a("s_add_u32 s42, s42, s40")
    a("s_lshl_b32 s43, s15, 10")
    a(f"s_add_u32 s43, s43, {hex(CSF)}")
    a("s_lshl_b32 s48, s14, 12")
    a(f"s_add_u32 s48, s48, {hex(ST)}")
    a("s_lshl_b32 s34, s10, 13")
    a("v_and_b32 v6, 31, v0")
    a("v_lshrrev_b32 v7, 5, v0")
    a("v_lshlrev_b32 v7, 11, v7")
    a("v_lshl_add_u32 v6, v6, 3, v7")
    a("s_waitcnt lgkmcnt(0)")
    srd(a, 28, 4, 5, "s48", 4096)
    st_ids = [vm.issue(f"buffer_load_dwordx2 {vr(T+2*k,2)}, v6, s[28:31], 0 offen offset:{k*256}") for k in range(8)]
    srd(a, 16, 4, 5, "s41", 7*32768)
    dma_ids = {}
    def dma(t):
        slot = t % NSLOT
        for half in range(2):
            a(f"s_add_u32 m0, s34, {slot*32768 + half*4096}")
            a(f"s_add_u32 s35, s34, {t*32768 + half*4096}")
            for i in range(4):
                dma_ids[t] = vm.issue(f"buffer_load_dwordx4 {vL16}, s[16:19], s35 offen offset:{i*1024} lds")
    dma(0)
    dma(1)
    srd(a, 20, 4, 5, "s42", 32768)
    x_ids = []
    for ks in range(32):
        if ks % 4 == 0: a(f"s_mov_b32 s36, {(ks//4)*4096}")
        x_ids.append(vm.issue(f"buffer_load_dwordx4 {ar(4*ks,4)}, {vL16}, s[20:23], s36 offen offset:{(ks%4)*1024}"))
    srd(a, 24, 4, 5, "s43", 7*1024)
    a("s_movk_i32 s38, 4096")
    vm.wait(st_ids[-1])
    cs_ids = [vm.issue(f"buffer_load_dwordx4 {vr(CSR+4*t,4)}, {vL16}, s[24:27], {'0' if t < 4 else 's38'} offen offset:{(t%4)*1024}") for t in range(7)]
    dma(2)
    for k in (4, 2, 1):
        for i in range(k):
            a(f"v_pk_add_f32 {vr(T+2*i,2)}, {vr(T+2*i,2)}, {vr(T+2*(i+k),2)}")
    a(f"v_mov_b32 v{T+2}, v{T}")
    a(f"v_mov_b32 v{T+3}, v{T+1}")
    a.nop(2)
    a(f"v_permlane32_swap_b32 v{T}, v{T+2}")
    a(f"v_permlane32_swap_b32 v{T+1}, v{T+3}")
    a.nop(1)
    a(f"v_pk_add_f32 {vr(T,2)}, {vr(T,2)}, {vr(T+2,2)}")
    a(f"v_mul_f32 v{T}, 0x3b000000, v{T}")
    a(f"v_mul_f32 v{T+1}, 0x3b000000, v{T+1}")
    a(f"v_fma_f32 v{T+1}, -v{T}, v{T}, v{T+1}")
    a(f"v_add_f32 v{vQ}, 0x3727c5ac, v{T+1}")
    a(f"v_rsq_f32 v{vC1}, v{vQ}")
    a(f"v_sub_f32 v{T+2}, 0, v{T}")
    a(f"v_mul_f32 v{vC1}, 0xbfb8aa3b, v{vC1}")
    a(f"v_cvt_pk_bf16_f32 v{T+3}, v{T+2}, v{T+2}")
    a(f"v_and_b32 v{T+4}, 0xffff0000, v{T+3}")
    a(f"v_sub_f32 v{T+4}, v{T+2}, v{T+4}")
    a(f"v_cvt_pk_bf16_f32 v{T+4}, v{T+4}, v{T+4}")
    a(f"v_and_b32 v{T+4}, 0xffff, v{T+4}")
    a("v_cmp_gt_u32 vcc, 32, v0")
    a(f"v_mov_b32 v{MB+2}, 0")
    a(f"v_mov_b32 v{MB+3}, 0")
    a(f"v_cndmask_b32 v{MB}, 0, v{T+3}, vcc")
    a(f"v_cndmask_b32 v{MB+1}, 0, v{T+4}, vcc")
    a("s_mul_i32 s33, s14, 112")
    a("s_add_u32 s33, s33, s15")
    a("s_lshl_b32 s33, s33, 10")
    a(f"s_add_u32 s33, s33, {hex(H)}")
    srd(a, 44, 4, 5, "s33", 7*1024)
    a(f"v_add_u32 v3, 0x10000, {vL16}")
    a(f"v_add_u32 v13, 0x20000, {vL16}")

    order = []
    for ks in range(32): order += [(0, ks), (1, ks)]
    for t in range(2, 7): order += [(t, ks) for ks in range(32)]
    N = len(order)
    last_use = {}
    for k, (t, ks) in enumerate(order): last_use[t] = k
    def wread(k):
        t, ks = order[k]
        off = (t % NSLOT)*32768 + ks*1024
        a(f"ds_read_b128 {vr(WR+4*(k%NWR),4)}, {vWb[off >> 16]} offset:{off & 0xffff}")
    def epi(t):
        A = ACC + 16*t
        E = T
        L = []
        for i in range(8): L.append((4, f"v_mul_f32 v{E+i}, v{vC1}, v{A+i}"))
        for i in range(8): L.append((8, f"v_exp_f32 v{E+i}, v{E+i}"))
        for i in range(8): L.append((4, f"v_mul_f32 v{E+8+i}, v{A+i}, v{A+8+i}"))
        for i in range(8): L.append((4, f"v_fma_f32 v{E+i}, v{E+i}, v{vQ}, v{vQ}"))
        for i in range(8): L.append((8, f"v_rcp_f32 v{E+i}, v{E+i}"))
        for i in range(8): L.append((4, f"v_mul_f32 v{E+8+i}, v{E+8+i}, v{E+i}"))
        for p in range(4): L.append((4, f"v_cvt_pk_bf16_f32 v{E+16+p}, v{E+8+2*p}, v{E+8+2*p+1}"))
        L.append((8, "s_nop 1"))
        L.append((4, f"v_permlane32_swap_b32 v{E+16}, v{E+18}"))
        L.append((4, f"v_permlane32_swap_b32 v{E+17}, v{E+19}"))
        L.append((4, ("ST", f"buffer_store_dwordx4 {vr(E+16,4)}, {vL16}, s[44:47], {'0' if t < 4 else 's38'} offen offset:{(t%4)*1024}")))
        return L
    pending = []
    def emit(budget, k):
        while pending and budget > 0 and pending[0][0] <= k:
            _, cost, x = pending.pop(0)
            if isinstance(x, tuple): vm.issue(x[1])
            else: a(x)
            budget -= cost
    PF = NWR - 1
    ready = set()
    vm.wait(dma_ids[1]); a("s_barrier"); ready.update({0, 1})
    dma(3)
    for k in range(PF): wread(k)
    nread = PF
    for k, (t, ks) in enumerate(order):
        if k == 16: dma(4)
        if nread < N:
            tn = order[nread][0]
            if tn not in ready:
                vm.wait(dma_ids[tn]); a("s_barrier"); ready.add(tn)
                if tn == 3: dma(5); dma(6)
            wread(nread); nread += 1
        a(f"s_waitcnt lgkmcnt({nread - 1 - k})")
        if t == 0: vm.wait(x_ids[ks])
        A = ACC + 16*t
        a(f"v_mfma_f32_32x32x16_bf16 {vr(A,16)}, {vr(WR+4*(k%NWR),4)}, {ar(4*ks,4)}, {'0' if ks == 0 else vr(A,16)}")
        if k == last_use[t]:
            if t == 0: vm.wait(cs_ids[-1])
            a(f"v_mfma_f32_32x32x16_bf16 {vr(A,16)}, {vr(CSR+4*t,4)}, {vr(MB,4)}, {vr(A,16)}")
            for c, x in epi(t): pending.append((k + 4, c, x))
        emit(16, k)
    a.nop(12)
    emit(10**9, 10**9)
    a("s_endpgm")

def build():
    a = Asm()
    hdr = open("interleave_layers__spectral_fnet__swiglu_ffn__prompt.s.ref").read().split("\n")
    hdr = [l for l in hdr if l.startswith(";") and "@launch" not in l and "Override launch" not in l and "grid=ceil" not in l]
    launches = [
        ("k1_kernel", 256 + 112, 81920), ("k2_kernel", 256 + 28 + 56, 81920), ("k3_kernel", 256, 163840), ("k4_kernel", 256, 131072),
        ("k5_kernel", 256, 131072 + 1024), ("k6_kernel", 256, 81920), ("k7_kernel", 256, 163840), ("k8_kernel", 256, 131072)]
    for l in hdr: a.raw(l)
    for n, g, lds in launches: a.raw(f"; @launch kernel={n} grid=({g},1,1) block=(256,1,1) lds={lds}")
    a.raw('.amdgcn_target "amdgcn-amd-amdhsa--gfx950"')
    a.raw(".text")
    kernel_head(a, "k1_kernel")
    a("s_cmp_ge_u32 s2, 368"); a("s_cbranch_scc1 k1_exit")
    a("s_cmp_ge_u32 s2, 256"); a("s_cbranch_scc1 swf_body")
    gen_T2(a, "k1_body", True, 5, 0, 0)
    a.label("k1_exit"); a("s_endpgm")
    gen_SWF(a, "swf_body")
    def k2_extra(a, kname):
        a("s_cmp_ge_u32 s2, 340"); a(f"s_cbranch_scc1 {kname}_exit")
        a("s_cmp_ge_u32 s2, 284"); a("s_cbranch_scc1 swd_body")
        a("s_cmp_ge_u32 s2, 256"); a("s_cbranch_scc1 scs_body")
    t1_stub(a, "k2_kernel", "t1a_body", 256, V, 16, GT, 8, 1, 0, 0, X1, ST, 1, extra=k2_extra)
    gen_T1(a, "t1a_body", 5)
    gen_SCS(a, "scs_body", 256)
    gen_SWD(a, "swd_body", 284)
    t1_stub(a, "k6_kernel", "t1a_body", 256, V, 16, GT, 8, 0, X2, 0, X3, ST, 1)
    for kn, xo in (("k3_kernel", X1), ("k7_kernel", X3)):
        kernel_head(a, kn)
        a("s_cmp_ge_u32 s2, 256"); a(f"s_cbranch_scc1 {kn}_exit")
        a(f"s_mov_b32 s40, {hex(xo)}")
        a("s_branch k3_body")
        a.label(kn + "_exit"); a("s_endpgm")
    gen_K3(a, "k3_body")
    t1_stub(a, "k4_kernel", "t1b_body", 256, WD, 0, H, 28, 0, X1, 0, X2, ST2, 1)
    t1_stub(a, "k8_kernel", "t1b_body", 256, WD, 0, H, 28, 0, X3, 1, 0, ST2, 0)
    gen_T1(a, "t1b_body", 8)
    kernel_head(a, "k5_kernel")
    a("s_cmp_ge_u32 s2, 256"); a("s_cbranch_scc1 k5_exit")
    gen_T2(a, "k5_body", False, 8, X2, ST2)
    a.label("k5_exit"); a("s_endpgm")
    a.raw('.section .rodata,"a"')
    for n, vg, acc in (("k1_kernel", 176, 176), ("k2_kernel", 104, 104), ("k3_kernel", 384, 256), ("k4_kernel", 104, 104),
                       ("k5_kernel", 176, 176), ("k6_kernel", 104, 104), ("k7_kernel", 384, 256), ("k8_kernel", 104, 104)):
        a.raw(kernel_desc(n, vg, acc))
    return a.text()

if __name__ == "__main__":
    t = build()
    out = sys.argv[1] if len(sys.argv) > 1 else "interleave_layers__spectral_fnet__swiglu_ffn__prompt.s"
    open(out, "w").write(t)
    probs = check_hazards(t)
    print("lines", t.count("\n"), "bytes", len(t), "hazards", len(probs))
```

```python
import sys
from asmlib import Asm, vr, ar, sr, check_hazards

X1, X2, X3 = 0x0, 0x200000, 0x400000
V0, V1 = 0x600000, 0xA00000
GT  = 0xE00000
WF  = 0x1000000
WD  = 0x1400000
H0, H1 = 0x1600000, 0x1D00000
CSP = 0x2400000
STA, STB, STC = 0x2440000, 0x2480000, 0x24C0000
CNT = 0x2500000
TS  = 0x2600000
XSZ = 0x200000
C1, C2, C3, C4, CS, CG = 0, 128, 160, 192, 224, 240
NCNT = 272
KA_X0, KA_HRE, KA_HIM, KA_WG, KA_WU, KA_WDN, KA_OUT, KA_DBG, KA_WS = 0, 24, 32, 48, 56, 64, 72, 80, 88
SRD3 = 0x00020000
PROF = False
SC = " sc1"
vL16 = "v1"

class VM:
    def __init__(self, a): self.a = a; self.n = 0
    def issue(self, text):
        self.a(text); self.n += 1; return self.n
    def wait(self, opid):
        k = self.n - opid
        assert 0 <= k <= 63, k
        self.a(f"s_waitcnt vmcnt({k})")

_uid = [0]
def uid(p):
    _uid[0] += 1
    return f"{p}_{_uid[0]}"
_stamp_i = [0]
STAMPS = []
INLOOP = [False]
def stamp(a, label):
    if not PROF: return
    i = _stamp_i[0]
    a("s_memtime s[92:93]")
    a("s_waitcnt lgkmcnt(0)")
    if INLOOP[0]:
        _stamp_i[0] += 2
        STAMPS.append(label + " L0"); STAMPS.append(label + " L1")
        A, B = uid("st"), uid("st")
        a("s_cmp_lg_u32 s72, 0"); a(f"s_cbranch_scc1 {A}")
        a(f"v_writelane_b32 v255, s92, {i}"); a(f"s_branch {B}")
        a.label(A); a(f"v_writelane_b32 v255, s92, {i+1}"); a.label(B)
    else:
        _stamp_i[0] += 1
        STAMPS.append(label)
        a(f"v_writelane_b32 v255, s92, {i}")

def srd(a, d, base_lo, off, size):
    if isinstance(off, int) and off == 0:
        a(f"s_mov_b32 s{d}, s{base_lo}"); a(f"s_mov_b32 s{d+1}, s{base_lo+1}")
    else:
        a(f"s_add_u32 s{d}, s{base_lo}, {off if not isinstance(off,int) else hex(off)}")
        a(f"s_addc_u32 s{d+1}, s{base_lo+1}, 0")
    a(f"s_mov_b32 s{d+2}, {size if not isinstance(size,int) else hex(size)}")
    a(f"s_mov_b32 s{d+3}, {hex(SRD3)}")

def sel(a, dst, v0, v1):
    if v0 == v1: a(f"s_mov_b32 {dst}, {hex(v0)}"); return
    a(f"s_mul_i32 {dst}, s72, {hex(v1 - v0) if v1 >= v0 else str(v1 - v0)}")
    a(f"s_add_u32 {dst}, {dst}, {hex(v0)}")

def token_of_c(a, vdst, vc, vtmp):
    a(f"v_lshrrev_b32 {vtmp}, 4, {vc}")
    a(f"v_lshlrev_b32 {vtmp}, 2, {vtmp}")
    a(f"v_and_b32 {vdst}, 3, {vc}")
    a(f"v_add_u32 {vdst}, {vdst}, {vtmp}")
    a(f"v_lshlrev_b32 {vdst}, 8, {vdst}")
    a(f"v_bfe_u32 {vtmp}, {vc}, 2, 2")
    a(f"v_lshl_add_u32 {vdst}, {vtmp}, 3, {vdst}")


def poll(a, vaddr, vtarget, nlanes, base="s[4:5]"):
    L, D, S = uid("poll"), uid("polld"), uid("polls")
    a("s_cmp_lg_u32 s10, 0")
    a(f"s_cbranch_scc1 {S}")
    a("s_cmp_lg_u32 s73, 0")
    a(f"s_cbranch_scc1 {S}")
    a(f"s_mov_b64 exec, {hex((1 << nlanes) - 1)}")
    a("s_mov_b32 s74, 0")
    a.label(L)
    a(f"global_load_dword v2, {vaddr}, {base} sc1")
    a("s_add_u32 s74, s74, 1")
    a("s_waitcnt vmcnt(0)")
    a(f"v_cmp_gt_u32 vcc, {vtarget}, v2")
    a(f"s_cbranch_vccz {D}")
    a("s_cmp_lt_u32 s74, 40000")
    a(f"s_cbranch_scc1 {L}")
    a("s_mov_b32 s73, 1")
    a.label(D)
    a("s_mov_b64 exec, -1")
    a.label(S)
    a("s_barrier")

def signal(a, vaddr, nlanes_mask_sreg=None, npend=0):
    S = uid("sig")
    a(f"s_waitcnt vmcnt({npend})")
    a("s_barrier")
    a("s_cmp_lg_u32 s10, 0")
    a(f"s_cbranch_scc1 {S}")
    if nlanes_mask_sreg is None: a("s_mov_b64 exec, 1")
    else: a(f"s_mov_b64 exec, {nlanes_mask_sreg}")
    a("v_mov_b32 v2, 1")
    a(f"global_atomic_add {vaddr}, v2, s[4:5] sc1")
    a("s_mov_b64 exec, -1")
    a.label(S)

def cnt_off(idx): return CNT + idx*256

def resid_addr(a, s_tau, s_dt32, s_r, vXF, vRM, vS, vt1, vt2, vt3):
    a(f"s_lshl_b32 s54, {s_tau}, 15")
    a(f"s_lshl_b32 s55, {s_dt32}, 11")
    a("s_add_u32 s54, s54, s55")
    a(f"v_add_u32 {vXF}, s54, {vL16}")
    a(f"v_and_b32 {vt1}, 31, v0")
    token_of_c(a, vRM, vt1, vt2)
    a(f"s_and_b32 s55, {s_tau}, 7")
    a("s_lshl_b32 s55, s55, 5")
    a(f"s_add_u32 s55, s55, {s_r}")
    a(f"v_add_u32 {vRM}, s55, {vRM}")
    a(f"v_lshlrev_b32 {vRM}, 10, {vRM}")
    a(f"v_lshrrev_b32 {vt2}, 5, v0")
    a(f"v_lshl_add_u32 {vRM}, {vt2}, 4, {vRM}")
    a(f"s_lshl_b32 s55, {s_dt32}, 6")
    a(f"v_add_u32 {vRM}, s55, {vRM}")
    a(f"s_lshl_b32 s54, {s_tau}, 12")
    a(f"s_lshl_b32 s55, {s_dt32}, 8")
    a("s_add_u32 s54, s54, s55")
    a(f"v_lshlrev_b32 {vS}, 3, {vt1}")
    a(f"v_add_u32 {vS}, s54, {vS}")

def resid_epilogue(a, ACC, RES, U, P, vO0, vO1, vS, sOut, sSt, stats_cond):
    a(f"v_permlane32_swap_b32 v{RES}, v{RES+2}")
    a(f"v_permlane32_swap_b32 v{RES+1}, v{RES+3}")
    a(f"v_permlane32_swap_b32 v{RES+4}, v{RES+6}")
    a(f"v_permlane32_swap_b32 v{RES+5}, v{RES+7}")
    for i in range(8):
        a(f"v_lshlrev_b32 v{U+2*i}, 16, v{RES+i}")
        a(f"v_and_b32 v{U+2*i+1}, 0xffff0000, v{RES+i}")
    for i in range(8):
        a(f"v_pk_add_f32 {vr(ACC+2*i,2)}, {vr(ACC+2*i,2)}, {vr(U+2*i,2)}")
    for i in range(8):
        a(f"v_cvt_pk_bf16_f32 v{P+i}, v{ACC+2*i}, v{ACC+2*i+1}")
    Sx, Qx = P + 8, P + 10
    a(f"v_pk_add_f32 {vr(Sx,2)}, {vr(ACC,2)}, {vr(ACC+2,2)}")
    a(f"v_pk_mul_f32 {vr(Qx,2)}, {vr(ACC,2)}, {vr(ACC,2)}")
    a(f"v_permlane32_swap_b32 v{P}, v{P+2}")
    a(f"v_permlane32_swap_b32 v{P+1}, v{P+3}")
    a(f"v_permlane32_swap_b32 v{P+4}, v{P+6}")
    a(f"v_permlane32_swap_b32 v{P+5}, v{P+7}")
    a(f"v_pk_fma_f32 {vr(Qx,2)}, {vr(ACC+2,2)}, {vr(ACC+2,2)}, {vr(Qx,2)}")
    a(f"buffer_store_dwordx4 {vr(P,4)}, {vO0}, {sOut}, 0 offen{SC}")
    a(f"buffer_store_dwordx4 {vr(P+4,4)}, {vO1}, {sOut}, 0 offen{SC}")
    E = uid("nost")
    if stats_cond is not None:
        a(stats_cond); a(f"s_cbranch_scc1 {E}")
    for i in range(2, 8):
        a(f"v_pk_add_f32 {vr(Sx,2)}, {vr(Sx,2)}, {vr(ACC+2*i,2)}")
        a(f"v_pk_fma_f32 {vr(Qx,2)}, {vr(ACC+2*i,2)}, {vr(ACC+2*i,2)}, {vr(Qx,2)}")
    T = P + 12
    a(f"v_add_f32 v{T}, v{Sx}, v{Sx+1}")
    a(f"v_add_f32 v{T+1}, v{Qx}, v{Qx+1}")
    a(f"v_mov_b32 v{T+2}, v{T}")
    a(f"v_mov_b32 v{T+3}, v{T+1}")
    a.nop(2)
    a(f"v_permlane32_swap_b32 v{T}, v{T+2}")
    a(f"v_permlane32_swap_b32 v{T+1}, v{T+3}")
    a.nop(1)
    a(f"v_add_f32 v{T}, v{T}, v{T+2}")
    a(f"v_add_f32 v{T+1}, v{T+1}, v{T+3}")
    a("s_mov_b64 exec, 0xffffffff")
    a(f"buffer_store_dwordx2 {vr(T,2)}, {vS}, {sSt}, 0 offen{SC}")
    a("s_mov_b64 exec, -1")
    if stats_cond is not None: a.label(E)

P1_STATS = 131072
def p1_roles(a):
    a("s_and_b32 s13, s12, 7")
    a("s_lshr_b32 s14, s12, 3")
    a("s_and_b32 s50, s10, 1")
    a("s_lshr_b32 s51, s10, 1")

def p1_prefetch_F(a, vm):
    p1_roles(a)
    a("v_lshrrev_b32 v2, 3, v0")
    a("v_and_b32 v3, 7, v0")
    a("s_lshl_b32 s54, s13, 5")
    a("s_lshl_b32 s55, s50, 4")
    a("s_add_u32 s54, s54, s55")
    a("s_cmp_eq_u32 s51, 0")
    a("s_cselect_b32 s16, s60, s62"); a("s_cselect_b32 s17, s61, s63")
    a("s_mov_b32 s18, 0x80000"); a(f"s_mov_b32 s19, {hex(SRD3)}")
    a("s_cselect_b32 s56, 0x100, 0")
    for i in range(2):
        a(f"v_add_u32 v4, {8*i}, v2")
        a("v_lshrrev_b32 v5, 1, v4")
        a("v_xor_b32 v5, v5, v3")
        a("v_lshlrev_b32 v5, 4, v5")
        a("v_add_u32 v4, s54, v4")
        a("v_cmp_eq_u32 vcc, 0, v4")
        a("v_mov_b32 v6, s56")
        a.nop(1)
        a("v_cndmask_b32 v4, v4, v6, vcc")
        a(f"v_lshl_add_u32 v{8+i}, v4, 10, v5")
    a("s_lshl_b32 s33, s50, 12")
    a("s_lshl_b32 s55, s51, 11")
    a("s_add_u32 s33, s33, s55")
    for s in range(8):
        for i in range(2):
            a(f"s_add_u32 m0, s33, {s*16384 + 8192 + i*1024}")
            a(f"s_mov_b32 s32, {s*128}")
            vm.issue(f"buffer_load_dwordx4 v{8+i}, s[16:19], s32 offen lds")

def gen_P1(a, layer0, xoff, stoff, voff, c4wait, c1idx, after_prologue=None):
    NST = 8
    vm = VM(a)
    vD = [8, 9]
    vAa = {(0,0,0):10,(0,0,1):11,(0,1,0):12,(0,1,1):13,(1,0,0):14,(1,0,1):15,(1,1,0):16,(1,1,1):17}
    vBa = {(0,0):18,(0,1):19,(1,0):20,(1,1):21}
    vDir, vMir, vSW, vSR = 22, 23, 24, 25
    X, Y = 28, 60
    C0, C1r, S0, S1 = 92, 96, 100, 104
    SA = 108
    RS = 112
    T = 120
    rm = layer0
    if layer0:
        p1_prefetch_F(a, vm)
    p1_roles(a)
    a("v_lshrrev_b32 v2, 3, v0")
    a("v_and_b32 v3, 7, v0")
    a("s_lshl_b32 s54, s14, 1")
    a("s_add_u32 s54, s54, s50")
    if rm:
        a("s_lshl_b32 s55, s54, 5")
        a("s_add_u32 s55, s55, s11")
        a("s_lshl_b32 s57, s51, 4")
        for i in range(2):
            a(f"v_add_u32 v4, {8*i}, v2")
            a("v_add_u32 v4, s57, v4")
            token_of_c(a, "v5", "v4", "v6")
            a("v_add_u32 v5, s55, v5")
            a("v_bfe_u32 v6, v4, 1, 3")
            a("v_xor_b32 v6, v6, v3")
            a("v_lshlrev_b32 v6, 4, v6")
            a(f"v_lshl_add_u32 v{vD[i]}, v5, 10, v6")
        srd(a, 20, 6, 0, XSZ)
        ASTR = 128
    else:
        a("s_lshl_b32 s57, s51, 11")
        for i in range(2):
            a(f"v_add_u32 v{vD[i]}, s57, {vL16}")
            if i: a(f"v_add_u32 v{vD[i]}, 1024, v{vD[i]}")
        a("s_lshl_b32 s55, s11, 3")
        a("s_add_u32 s55, s55, s54")
        a("s_lshl_b32 s55, s55, 15")
        a(f"s_add_u32 s55, s55, {hex(xoff)}")
        srd(a, 20, 4, "s55", 32768)
        ASTR = 4096
    a("s_lshl_b32 s33, s50, 12")
    a("s_lshl_b32 s55, s51, 11")
    a("s_add_u32 s33, s33, s55")
    ids = {}
    def dmaA():
        for s in range(NST):
            for i in range(2):
                a(f"s_add_u32 m0, s33, {s*16384 + i*1024}")
                a(f"s_mov_b32 s32, {s*ASTR}")
                ids[s] = vm.issue(f"buffer_load_dwordx4 v{vD[i]}, s[20:23], s32 offen{'' if rm else SC} lds")
    if rm:
        dmaA()
        if after_prologue: after_prologue(a, vm)
    a("v_and_b32 v2, 15, v0")
    a("v_lshrrev_b32 v3, 4, v0")
    a("v_lshrrev_b32 v4, 1, v2")
    a("s_lshl_b32 s52, s51, 2")
    a("v_add_u32 v5, s52, v3")
    a("v_xor_b32 v6, v5, v4")
    a("v_lshlrev_b32 v6, 4, v6")
    a("v_lshl_add_u32 v6, v2, 7, v6")
    a("v_xor_b32 v7, 64, v6")
    a("s_lshl_b32 s53, s51, 12")
    a("s_add_u32 s53, s53, 8192")
    a(f"v_add_u32 v{vBa[(0,0)]}, s53, v6")
    a(f"v_add_u32 v{vBa[(0,1)]}, s53, v7")
    a("s_lshl_b32 s53, s50, 12")
    if rm:
        for sub in range(2):
            a(f"s_add_u32 s54, s53, {sub*2048}")
            a(f"v_add_u32 v{vAa[(0,sub,0)]}, s54, v6")
            a(f"v_add_u32 v{vAa[(0,sub,1)]}, s54, v7")
    else:
        a("v_lshlrev_b32 v26, 9, v5")
        a("v_lshl_add_u32 v26, v2, 4, v26")
        a("v_xor_b32 v27, 2048, v26")
        for sub in range(2):
            a(f"s_add_u32 s54, s53, {sub*256}")
            a(f"v_add_u32 v{vAa[(0,sub,0)]}, s54, v26")
            a(f"v_add_u32 v{vAa[(0,sub,1)]}, s54, v27")
    for k, r_ in vAa.items():
        if k[0] == 1: a(f"v_add_u32 v{r_}, 0x10000, v{vAa[(0,)+k[1:]]}")
    for k, r_ in vBa.items():
        if k[0] == 1: a(f"v_add_u32 v{r_}, 0x10000, v{vBa[(0,k[1])]}")
    a("s_lshl_b32 s54, s13, 5")
    a("s_lshl_b32 s55, s51, 4")
    a("s_add_u32 s54, s54, s55")
    a("v_add_u32 v4, s54, v2")
    a("v_cmp_eq_u32 s[76:77], 0, v4")
    a("v_sub_u32 v5, 0x200, v4")
    a("v_mov_b32 v6, 0x100")
    a("v_cndmask_b32 v7, v4, v6, s[76:77]")
    a("v_mov_b32 v6, 0")
    a("v_cndmask_b32 v26, v5, v6, s[76:77]")
    a("s_lshl_b32 s54, s11, 2")
    a("s_add_u32 s54, s54, s14")
    a("s_lshl_b32 s54, s54, 10")
    a("s_lshl_b32 s55, s50, 9")
    a("s_add_u32 s54, s54, s55")
    a("v_lshlrev_b32 v6, 19, v3")
    a("v_add_u32 v6, s54, v6")
    for src, dst in (("v7", vDir), ("v26", vMir)):
        a(f"v_lshrrev_b32 v4, 5, {src}")
        a("v_lshlrev_b32 v4, 15, v4")
        a(f"v_and_b32 v5, 31, {src}")
        a("v_lshl_add_u32 v4, v5, 4, v4")
        a(f"v_add_u32 v{dst}, v4, v6") if dst == vDir else a(f"v_add_u32 v{dst}, s54, v4")
    a("v_sub_u32 v4, 8, v3")
    a("v_and_b32 v4, 7, v4")
    a("v_lshlrev_b32 v4, 19, v4")
    a(f"v_add_u32 v26, v{vMir}, v4")
    a("v_sub_u32 v4, 4, v3")
    a("v_lshlrev_b32 v4, 19, v4")
    a(f"v_add_u32 v27, v{vMir}, v4")
    a(f"v_mov_b32 v{vMir}, v26")
    vMir2 = 27
    for i in range(16): a(f"v_mov_b32 v{C0+i}, 0")
    for i in range(4): a(f"v_mov_b32 v{SA+i}, 0")
    a("s_mov_b32 s75, 0x3f803f80")
    a("s_lshl_b32 s54, s50, 9")
    a(f"s_add_u32 s54, s54, {P1_STATS}")
    a("v_and_b32 v4, 31, v0")
    a("s_lshl_b32 s55, s51, 3")
    a("s_add_u32 s55, s55, s54")
    a(f"v_lshlrev_b32 v{vSW}, 4, v4")
    a(f"v_add_u32 v{vSW}, s55, v{vSW}")
    a(f"v_lshlrev_b32 v{vSR}, 6, v3")
    a(f"v_add_u32 v{vSR}, s54, v{vSR}")
    def rstd_from_lds():
        for sub in range(2):
            for i in range(4):
                a(f"ds_read_b128 {vr(T+32+16*sub+4*i,4)}, v{vSR} offset:{sub*256+i*16}")
        a("s_waitcnt lgkmcnt(0)")
        a(f"s_mov_b32 s78, {hex(0x3b000000)}")
        a(f"s_mov_b32 s79, {hex(0x3b000000)}")
        for k in range(8):
            b = T + 32 + 4*k
            a(f"v_pk_add_f32 {vr(b,2)}, {vr(b,2)}, {vr(b+2,2)}")
        for k in range(8):
            b = T + 32 + 4*k
            a(f"v_pk_mul_f32 {vr(b,2)}, {vr(b,2)}, s[78:79]")
        for k in range(8):
            b = T + 32 + 4*k
            a(f"v_fma_f32 v{b+1}, -v{b}, v{b}, v{b+1}")
        for k in range(8):
            b = T + 32 + 4*k
            a(f"v_add_f32 v{b+1}, 0x3727c5ac, v{b+1}")
        for k in range(8):
            b = T + 32 + 4*k
            a(f"v_rsq_f32 v{RS+k}, v{b+1}")
    if rm:
        G = 28
        a("s_lshl_b32 s54, s11, 3")
        a("s_lshl_b32 s55, s14, 1")
        a("s_add_u32 s54, s54, s55")
        a("s_lshr_b32 s55, s13, 2")
        a("s_add_u32 s54, s54, s55")
        a("s_and_b32 s55, s54, 7")
        a("s_lshl_b32 s55, s55, 5")
        a("s_add_u32 s55, s55, s11")
        a(f"v_and_b32 v{G+4}, 31, v0")
        token_of_c(a, f"v{G}", f"v{G+4}", f"v{G+5}")
        a(f"v_add_u32 v{G}, s55, v{G}")
        a(f"v_lshrrev_b32 v{G+1}, 5, v0")
        a(f"v_lshlrev_b32 v{G+1}, 5, v{G+1}")
        srd(a, 24, 4, GT, 0x200000)
        a("s_and_b32 s57, s13, 3")
        a("s_lshl_b32 s57, s57, 3")
        a("s_lshl_b32 s58, s10, 1")
        a("s_add_u32 s57, s57, s58")
        a("s_lshl_b32 s58, s54, 15")
        a(f"v_add_u32 v{G+2}, s58, {vL16}")
        a(f"s_mov_b32 s80, {hex(0x3a000000)}")
        for x in range(2):
            a(f"s_add_u32 s59, s57, {x}")
            a("s_and_b32 s78, s59, 3")
            a("s_lshl_b32 s78, s78, 6")
            a("s_lshr_b32 s79, s59, 2")
            a("s_add_u32 s78, s78, s79")
            a(f"v_add_u32 v{G+3}, s78, v{G+1}")
            for q in range(4):
                a(f"v_add_u32 v{G+4}, {8*q}, v{G+3}")
                a(f"v_mul_u32_u24 v{G+4}, v{G+4}, v{G}")
                a(f"v_and_b32 v{G+4}, 0x7ff, v{G+4}")
                a(f"v_cvt_f32_u32 v{G+4}, v{G+4}")
                a(f"v_mul_f32 v{G+4}, s80, v{G+4}")
                a(f"v_cos_f32 v{G+6+2*q}, v{G+4}")
                a(f"v_sin_f32 v{G+6+2*q+1}, v{G+4}")
            a.nop(1)
            for q in range(4):
                a(f"v_cvt_pk_bf16_f32 v{G+16+4*x+q}, v{G+6+2*q}, v{G+6+2*q+1}")
            a("s_lshl_b32 s59, s59, 10")
            vm.issue(f"buffer_store_dwordx4 {vr(G+16+4*x,4)}, v{G+2}, s[24:27], s59 offen{SC}")
    else:
        a("s_lshl_b32 s54, s11, 2")
        a("s_add_u32 s54, s54, s14")
        a("s_lshl_b32 s54, s54, 8")
        a(f"s_add_u32 s54, s54, {hex(cnt_off(c4wait))}")
        a("v_mov_b32 v4, s54")
        a("v_mov_b32 v5, 8")
        stamp(a, "P1 poll")
        poll(a, "v4", "v5", 1)
        stamp(a, "P1 go")
        vm.n = 0
        a("s_lshl_b32 s54, s11, 3")
        a("s_lshl_b32 s55, s14, 1")
        a("s_add_u32 s54, s54, s55")
        a("s_add_u32 s54, s54, s50")
        a("s_lshl_b32 s54, s54, 12")
        a("s_lshl_b32 s55, s51, 11")
        a("s_add_u32 s54, s54, s55")
        a("v_and_b32 v4, 31, v0")
        a("v_lshrrev_b32 v5, 5, v0")
        a("v_lshlrev_b32 v5, 10, v5")
        a("v_lshl_add_u32 v5, v4, 3, v5")
        a("v_add_u32 v5, s54, v5")
        srd(a, 24, 4, stoff, 0x40000)
        st_ids = [vm.issue(f"buffer_load_dwordx2 {vr(T+16+2*k,2)}, v5, s[24:27], 0 offen offset:{k*256}{SC}") for k in range(4)]
        dmaA()
        vm.wait(st_ids[-1])
        b = T + 16
        a(f"v_pk_add_f32 {vr(b,2)}, {vr(b,2)}, {vr(b+2,2)}")
        a(f"v_pk_add_f32 {vr(b+4,2)}, {vr(b+4,2)}, {vr(b+6,2)}")
        a(f"v_pk_add_f32 {vr(b,2)}, {vr(b,2)}, {vr(b+4,2)}")
        a(f"v_mov_b32 v{b+2}, v{b}")
        a(f"v_mov_b32 v{b+3}, v{b+1}")
        a.nop(2)
        a(f"v_permlane32_swap_b32 v{b}, v{b+2}")
        a(f"v_permlane32_swap_b32 v{b+1}, v{b+3}")
        a.nop(1)
        a(f"v_pk_add_f32 {vr(b,2)}, {vr(b,2)}, {vr(b+2,2)}")
        a("s_mov_b64 exec, 0xffffffff")
        a(f"ds_write_b64 v{vSW}, {vr(b,2)}")
        a("s_mov_b64 exec, -1")
        a("s_waitcnt lgkmcnt(0)")
    srd(a, 28, 4, voff, 0x400000)
    def reads(s, R):
        hi = 1 if s >= 4 else 0
        off = (s - 4*hi) * 16384
        for kk in range(2):
            for sub in range(2):
                a(f"ds_read_b128 {vr(R+8*kk+4*sub,4)}, v{vAa[(hi,sub,kk)]} offset:{off}")
            for cs in range(2):
                a(f"ds_read_b128 {vr(R+16+8*kk+4*cs,4)}, v{vBa[(hi,kk)]} offset:{off+cs*2048}")
    def mfmas(M):
        for kk in range(2):
            for cs in range(2):
                for sub in range(2):
                    acc = (C0, C1r)[sub] if cs == 0 else (S0, S1)[sub]
                    a(f"v_mfma_f32_16x16x32_bf16 {vr(acc,4)}, {vr(M+8*kk+4*sub,4)}, {vr(M+16+8*kk+4*cs,4)}, {vr(acc,4)}")
        if rm:
            for sub in range(2):
                for i in range(4):
                    a(f"v_dot2_f32_bf16 v{SA+2*sub}, v{M+4*sub+i}, s75, v{SA+2*sub}")
                    a(f"v_dot2_f32_bf16 v{SA+2*sub+1}, v{M+4*sub+i}, v{M+4*sub+i}, v{SA+2*sub+1}")
    sets = [X, Y]
    for s in range(NST):
        vm.wait(ids[s])
        a("s_barrier")
        if s == 0: stamp(a, "P1 first data")
        reads(s, sets[s & 1])
        if s >= 1: mfmas(sets[(s - 1) & 1])
        if s == 0 and not rm: rstd_from_lds()
        a("s_waitcnt lgkmcnt(0)")
    mfmas(sets[(NST - 1) & 1])
    stamp(a, "P1 main done")
    if rm:
        a.nop(3)
        for k in range(4): a(f"v_mov_b32 v{T+k}, v{SA+k}")
        a.nop(2)
        for k in range(4): a(f"v_permlane16_swap_b32 v{SA+k}, v{T+k}")
        a.nop(1)
        for k in range(4): a(f"v_add_f32 v{SA+k}, v{SA+k}, v{T+k}")
        for k in range(4): a(f"v_mov_b32 v{T+k}, v{SA+k}")
        a.nop(2)
        for k in range(4): a(f"v_permlane32_swap_b32 v{SA+k}, v{T+k}")
        a.nop(1)
        for k in range(4): a(f"v_add_f32 v{SA+k}, v{SA+k}, v{T+k}")
        a("v_cmp_gt_u32 vcc, 16, v0")
        a.nop(2)
        a(f"v_cndmask_b32 v{T}, v{SA+2}, v{SA}, vcc")
        a(f"v_cndmask_b32 v{T+1}, v{SA+3}, v{SA+1}, vcc")
        a("s_mov_b64 exec, 0xffffffff")
        a(f"ds_write_b64 v{vSW}, {vr(T,2)}")
        a("s_mov_b64 exec, -1")
        a("s_waitcnt lgkmcnt(0)")
        a("s_barrier")
        rstd_from_lds()
    else:
        a.nop(8)
    a.nop(1)
    for acc, rs in ((C0, RS), (C1r, RS+4), (S0, RS), (S1, RS+4)):
        a(f"v_pk_mul_f32 {vr(acc,2)}, {vr(acc,2)}, {vr(rs,2)}")
        a(f"v_pk_mul_f32 {vr(acc+2,2)}, {vr(acc+2,2)}, {vr(rs+2,2)}")
    AR, AI, DR, DI = 28, 32, 36, 40
    NEG = "neg_lo:[0,1] neg_hi:[0,1]"
    for h in (0, 2):
        a(f"v_pk_add_f32 {vr(AR+h,2)}, {vr(C0+h,2)}, {vr(C1r+h,2)}")
        a(f"v_pk_add_f32 {vr(DR+h,2)}, {vr(C0+h,2)}, {vr(C1r+h,2)} {NEG}")
        a(f"v_pk_add_f32 {vr(AI+h,2)}, {vr(S0+h,2)}, {vr(S1+h,2)}")
        a(f"v_pk_add_f32 {vr(DI+h,2)}, {vr(S0+h,2)}, {vr(S1+h,2)} {NEG}")
    ER, EI, FR, FI = 44, 46, 48, 50
    a(f"v_pk_add_f32 {vr(ER,2)}, {vr(AR,2)}, {vr(AR+2,2)}")
    a(f"v_pk_add_f32 {vr(EI,2)}, {vr(AI,2)}, {vr(AI+2,2)}")
    a(f"v_pk_add_f32 {vr(FR,2)}, {vr(AR,2)}, {vr(AR+2,2)} {NEG}")
    a(f"v_pk_add_f32 {vr(FI,2)}, {vr(AI,2)}, {vr(AI+2,2)} {NEG}")
    UR, UI = 60, 68
    a(f"v_add_f32 v{UR+0}, v{ER}, v{ER+1}");  a(f"v_add_f32 v{UI+0}, v{EI}, v{EI+1}")
    a(f"v_sub_f32 v{UR+4}, v{ER}, v{ER+1}");  a(f"v_sub_f32 v{UI+4}, v{EI}, v{EI+1}")
    a(f"v_add_f32 v{UR+2}, v{FR}, v{FI+1}");  a(f"v_sub_f32 v{UI+2}, v{FI}, v{FR+1}")
    a(f"v_sub_f32 v{UR+6}, v{FR}, v{FI+1}");  a(f"v_add_f32 v{UI+6}, v{FI}, v{FR+1}")
    g0r, g0i, h0r, h0i = 52, 53, 54, 55
    p, q, p2, q2 = 56, 57, 58, 59
    t1, t2, t3, t4 = 76, 77, 78, 79
    a(f"v_add_f32 v{g0r}, v{DR}, v{DI+2}");   a(f"v_sub_f32 v{g0i}, v{DI}, v{DR+2}")
    a(f"v_sub_f32 v{h0r}, v{DR}, v{DI+2}");   a(f"v_add_f32 v{h0i}, v{DI}, v{DR+2}")
    a(f"v_sub_f32 v{p}, v{DR+1}, v{DR+3}");   a(f"v_add_f32 v{q}, v{DI+1}, v{DI+3}")
    a(f"v_add_f32 v{p2}, v{DR+1}, v{DR+3}");  a(f"v_sub_f32 v{q2}, v{DI+1}, v{DI+3}")
    a(f"v_add_f32 v{t1}, v{p}, v{q}");        a(f"v_sub_f32 v{t2}, v{q2}, v{p2}")
    a(f"v_add_f32 v{t3}, v{p2}, v{q2}");      a(f"v_sub_f32 v{t4}, v{q}, v{p}")
    a(f"s_mov_b32 s75, {hex(0x3f3504f3)}")
    a(f"v_fma_f32 v{UR+1}, s75, v{t1}, v{g0r}");   a(f"v_fma_f32 v{UR+5}, -s75, v{t1}, v{g0r}")
    a(f"v_fma_f32 v{UI+1}, s75, v{t2}, v{g0i}");   a(f"v_fma_f32 v{UI+5}, -s75, v{t2}, v{g0i}")
    a(f"v_fma_f32 v{UR+3}, s75, v{t4}, v{h0r}");   a(f"v_fma_f32 v{UR+7}, -s75, v{t4}, v{h0r}")
    a(f"v_fma_f32 v{UI+3}, -s75, v{t3}, v{h0i}");  a(f"v_fma_f32 v{UI+7}, s75, v{t3}, v{h0i}")
    DD, MM = 80, 88
    for r in range(8): a(f"v_cvt_pk_bf16_f32 v{DD+r}, v{UR+r}, v{UI+r}")
    a("v_mov_b32 v76, 0x80000000")
    a("v_mov_b32 v77, 0")
    for r in range(8): a(f"v_xor_b32 v{MM+r}, v76, v{DD+r}")
    for r in range(8): a(f"v_cndmask_b32 v{MM+r}, v{MM+r}, v77, s[76:77]")
    def transp(R):
        a(f"v_permlane32_swap_b32 v{R}, v{R+2}")
        a(f"v_permlane32_swap_b32 v{R+1}, v{R+3}")
        a.nop(2)
        a(f"v_permlane16_swap_b32 v{R}, v{R+1}")
        a(f"v_permlane16_swap_b32 v{R+2}, v{R+3}")
    transp(DD); transp(DD+4); transp(MM); transp(MM+4)
    a("s_mov_b32 s54, 0x200000")
    a(f"buffer_store_dwordx4 {vr(DD,4)}, v{vDir}, s[28:31], 0 offen{SC}")
    a(f"buffer_store_dwordx4 {vr(DD+4,4)}, v{vDir}, s[28:31], s54 offen{SC}")
    a(f"buffer_store_dwordx4 {vr(MM,4)}, v{vMir}, s[28:31], 0 offen{SC}")
    a(f"buffer_store_dwordx4 {vr(MM+4,4)}, v{vMir2}, s[28:31], 0 offen{SC}")
    stamp(a, "P1 stores issued")
    a("s_lshr_b32 s54, s13, 1")
    a("v_mov_b32 v4, s54")
    a("s_sub_u32 s55, 7, s54")
    a("v_writelane_b32 v4, s55, 1")
    a("s_sub_u32 s55, 8, s54")
    a("s_cmp_eq_u32 s13, 0")
    a("s_cselect_b32 s55, 4, s55")
    a("v_writelane_b32 v4, s55, 2")
    a("v_lshlrev_b32 v4, 3, v4")
    a("v_add_u32 v4, s11, v4")
    a("v_lshlrev_b32 v4, 8, v4")
    a(f"v_add_u32 v4, {hex(cnt_off(c1idx))}, v4")
    if rm:
        a("s_lshl_b32 s55, s11, 2")
        a("s_add_u32 s55, s55, s14")
        a("s_lshl_b32 s55, s55, 8")
        a(f"s_add_u32 s55, s55, {hex(cnt_off(CG))}")
        a("v_writelane_b32 v4, s55, 3")
    a("s_bitcmp0_b32 s13, 0")
    if rm: a("s_cselect_b32 s56, 15, 11")
    else: a("s_cselect_b32 s56, 7, 3")
    a("s_mov_b32 s57, 0")
    return "s[56:57]"

def t1_roles(a):
    a("s_and_b32 s13, s12, 7")
    a("s_lshr_b32 s14, s12, 3")
    a("s_and_b32 s50, s10, 1")
    a("s_lshr_b32 s51, s10, 1")

def p2_prefetch_G(a, vm):
    t1_roles(a)
    a("s_lshl_b32 s54, s11, 3")
    a("s_lshl_b32 s55, s14, 1")
    a("s_add_u32 s54, s54, s55")
    a("s_add_u32 s54, s54, s50")
    a("s_lshl_b32 s54, s54, 15")
    a(f"s_add_u32 s54, s54, {hex(GT)}")
    srd(a, 16, 4, "s54", 32768)
    a("s_lshl_b32 s33, s50, 12")
    a("s_lshl_b32 s55, s51, 11")
    a("s_add_u32 s33, s33, s55")
    for s in range(8):
        a(f"s_add_u32 m0, s33, {s*16384 + 8192}")
        a(f"s_add_u32 s32, s55, {s*4096}")
        for i in range(2):
            vm.issue(f"buffer_load_dwordx4 {vL16}, s[16:19], s32 offen offset:{i*1024}{SC} lds")

def gen_P2(a):
    vm = VM(a)
    vA, vB = 8, 9
    vR0, vR1, vO0, vO1, vS = "v12", "v13", "v14", "v15", "v16"
    X, Y, ACC, RES = 28, 60, 92, 108
    t1_roles(a)
    a("s_lshl_b32 s36, s13, 1")
    a("s_add_u32 s52, s36, s50")
    a("s_lshl_b32 s37, s11, 3")
    a("s_lshl_b32 s38, s14, 1")
    a("s_add_u32 s37, s37, s38")
    a("s_add_u32 s53, s37, s51")
    resid_addr(a, "s53", "s52", "s11", "v17", "v18", vS, "v19", "v20", None)
    a("s_cmp_eq_u32 s41, 0")
    a("s_cselect_b64 vcc, -1, 0")
    a("s_cselect_b32 s56, 1024, 32")
    a(f"v_cndmask_b32 {vR0}, v18, v17, vcc")
    a(f"v_add_u32 {vR1}, s56, {vR0}")
    a(f"v_mov_b32 {vO0}, v17")
    a(f"v_add_u32 {vO1}, 1024, v17")
    a("s_add_u32 s20, s4, s42"); a("s_addc_u32 s21, s5, 0")
    a("s_cmp_eq_u32 s41, 0")
    a("s_cselect_b32 s20, s20, s6"); a("s_cselect_b32 s21, s21, s7")
    a(f"s_mov_b32 s22, {hex(XSZ)}"); a(f"s_mov_b32 s23, {hex(SRD3)}")
    a(f"buffer_load_dwordx4 {vr(RES,4)}, {vR0}, s[20:23], 0 offen{SC}")
    a(f"buffer_load_dwordx4 {vr(RES+4,4)}, {vR1}, s[20:23], 0 offen{SC}")
    a("s_lshl_b32 s54, s50, 12")
    a(f"v_add_u32 v{vA}, s54, {vL16}")
    a("s_lshl_b32 s54, s51, 12")
    a("s_add_u32 s54, s54, 8192")
    a(f"v_add_u32 v{vB}, s54, {vL16}")
    a(f"v_add_u32 v{vA+2}, 0x10000, v{vA}")
    a(f"v_add_u32 v{vB+2}, 0x10000, v{vB}")
    a("s_lshl_b32 s54, s11, 4")
    a("s_add_u32 s54, s54, s52")
    a("s_lshl_b32 s54, s54, 15")
    a("s_add_u32 s54, s54, s40")
    srd(a, 16, 4, "s54", 32768)
    srd(a, 24, 4, "s43", XSZ)
    srd(a, 28, 4, "s44", 0x40000)
    a("s_lshl_b32 s33, s50, 12")
    a("s_lshl_b32 s55, s51, 11")
    a("s_add_u32 s33, s33, s55")
    for i in range(16): a(f"v_mov_b32 v{ACC+i}, 0")
    a("s_lshl_b32 s54, s13, 11")
    a("s_add_u32 s54, s54, s45")
    a("v_lshlrev_b32 v4, 8, v0")
    a("v_add_u32 v4, s54, v4")
    a("s_cmp_lt_u32 s13, 4")
    a("s_cselect_b32 s54, 8, 12")
    a("v_mov_b32 v5, s54")
    stamp(a, "P2 poll")
    poll(a, "v4", "v5", 8)
    stamp(a, "P2 go")
    ids = {}
    for s in range(8):
        a(f"s_add_u32 m0, s33, {s*16384}")
        a(f"s_add_u32 s32, s55, {s*4096}")
        for i in range(2):
            ids[s] = vm.issue(f"buffer_load_dwordx4 {vL16}, s[16:19], s32 offen offset:{i*1024}{SC} lds")
    def reads(s, R):
        hi = 2 if s >= 4 else 0
        off = (s % 4) * 16384
        for k in range(4):
            a(f"ds_read_b128 {vr(R+4*k,4)}, v{vA+hi} offset:{off+k*1024}")
            a(f"ds_read_b128 {vr(R+16+4*k,4)}, v{vB+hi} offset:{off+k*1024}")
    def mfmas(M):
        for k in range(4):
            a(f"v_mfma_f32_32x32x16_bf16 {vr(ACC,16)}, {vr(M+4*k,4)}, {vr(M+16+4*k,4)}, {vr(ACC,16)}")
    sets = [X, Y]
    for s in range(8):
        vm.wait(ids[s])
        a("s_barrier")
        if s == 0: stamp(a, "P2 first data")
        reads(s, sets[s & 1])
        if s >= 1: mfmas(sets[(s - 1) & 1])
        a("s_waitcnt lgkmcnt(0)")
    mfmas(sets[1])
    stamp(a, "P2 main done")
    resid_epilogue(a, ACC, RES, X, Y, vO0, vO1, vS, "s[24:27]", "s[28:31]", None)
    stamp(a, "P2 stores issued")
    a("s_lshl_b32 s54, s11, 1")
    a("s_lshr_b32 s55, s14, 1")
    a("s_add_u32 s54, s54, s55")
    a("s_lshl_b32 s54, s54, 8")
    a("s_add_u32 s54, s54, s46")
    a("v_mov_b32 v4, s54")

def p3_roles(a):
    a("s_and_b32 s13, s11, 3")
    a("s_lshl_b32 s13, s13, 2")
    a("s_and_b32 s14, s12, 3")
    a("s_add_u32 s13, s13, s14")
    a("s_lshr_b32 s14, s11, 2")
    a("s_lshl_b32 s14, s14, 3")
    a("s_lshr_b32 s15, s12, 2")
    a("s_add_u32 s14, s14, s15")
    a("s_mul_i32 s15, s13, 7")

def p3_dma(a, vm, t, ids, slot=None):
    if slot is None: slot = t % 5
    for half in range(2):
        a(f"s_add_u32 m0, s34, {slot*32768 + half*4096}")
        a(f"s_add_u32 s35, s34, {t*32768 + half*4096}")
        for i in range(4):
            ids[t] = vm.issue(f"buffer_load_dwordx4 {vL16}, s[16:19], s35 offen offset:{i*1024}{SC} lds")

def p3_prefetch_W(a, vm, ids):
    p3_roles(a)
    a("s_lshl_b32 s41, s15, 15")
    a(f"s_add_u32 s41, s41, {hex(WF)}")
    srd(a, 16, 4, "s41", 7*32768)
    a("s_lshl_b32 s34, s10, 13")
    for t in range(3): p3_dma(a, vm, t, ids)

def gen_P3(a, vm, dma_ids):
    NSLOT = 5
    vWb = [vL16, "v3", "v13"]
    NWR = 8
    WR = 16
    CSR = 48
    MB = 76
    ACC = 80
    T = 192
    vQ, vC1 = 4, 5
    a("v_and_b32 v6, 31, v0")
    a("v_lshrrev_b32 v7, 5, v0")
    a("v_lshlrev_b32 v8, 6, v6")
    a("v_lshl_add_u32 v8, v7, 5, v8")
    a("s_lshl_b32 s33, s15, 11")
    a(f"s_add_u32 s33, s33, {hex(CSP)}")
    srd(a, 24, 4, "s33", 7*2048)
    CT = ACC
    csp = []
    a("s_movk_i32 s38, 4096")
    for t in range(7):
        so = ("0", "s38", "s39")[(t*2048) // 4096] if False else None
        a(f"s_mov_b32 s39, {t*2048}")
        csp.append(vm.issue(f"buffer_load_dwordx4 {vr(CT+8*t,4)}, v8, s[24:27], s39 offen{SC}"))
        csp.append(vm.issue(f"buffer_load_dwordx4 {vr(CT+8*t+4,4)}, v8, s[24:27], s39 offen offset:16{SC}"))
    a("s_lshl_b32 s14, s14, 2")
    a("s_add_u32 s14, s14, s10")
    a("s_lshl_b32 s33, s14, 15")
    a("s_add_u32 s33, s33, s40")
    srd(a, 20, 4, "s33", 32768)
    a("s_lshl_b32 s33, s14, 12")
    a("s_add_u32 s33, s33, s42")
    srd(a, 28, 4, "s33", 4096)
    a("s_mul_i32 s33, s14, 112")
    a("s_add_u32 s33, s33, s15")
    a("s_lshl_b32 s33, s33, 10")
    a("s_add_u32 s33, s33, s43")
    srd(a, 44+4, 4, "s33", 7*1024)
    a("v_lshlrev_b32 v7, 11, v7")
    a("v_lshl_add_u32 v6, v6, 3, v7")
    a(f"v_add_u32 v3, 0x10000, {vL16}")
    a(f"v_add_u32 v13, 0x20000, {vL16}")
    vm.wait(csp[-1])
    for t in range(7):
        b = CT + 8*t
        a(f"v_pk_add_f32 {vr(b,2)}, {vr(b,2)}, {vr(b+2,2)}")
        a(f"v_pk_add_f32 {vr(b+4,2)}, {vr(b+4,2)}, {vr(b+6,2)}")
        a(f"v_pk_add_f32 {vr(b,2)}, {vr(b,2)}, {vr(b+4,2)}")
        a(f"v_add_f32 v{b}, v{b}, v{b+1}")
        a(f"v_mov_b32 v{b+1}, v{b}")
    a.nop(1)
    for t in range(7):
        b = CT + 8*t
        a(f"v_permlane32_swap_b32 v{b}, v{b+1}")
    a("v_cmp_gt_u32 vcc, 32, v0")
    for t in range(7):
        b = CT + 8*t; c = CSR + 4*t
        a(f"v_add_f32 v{b}, v{b}, v{b+1}")
        a(f"v_cvt_pk_bf16_f32 v{b+2}, v{b}, v{b}")
        a(f"v_and_b32 v{b+3}, 0xffff0000, v{b+2}")
        a(f"v_sub_f32 v{b+3}, v{b}, v{b+3}")
        a(f"v_cvt_pk_bf16_f32 v{b+3}, v{b+3}, v{b+3}")
        a(f"v_and_b32 v{b+2}, 0xffff, v{b+2}")
        a(f"v_lshl_or_b32 v{b+3}, v{b+3}, 16, v{b+2}")
        a(f"v_cndmask_b32 v{c}, 0, v{b+3}, vcc")
        a(f"v_cndmask_b32 v{c+1}, 0, v{b+2}, vcc")
        a(f"v_mov_b32 v{c+2}, 0")
        a(f"v_mov_b32 v{c+3}, 0")
    a("s_lshr_b32 s54, s14, 2")
    a("s_lshl_b32 s54, s54, 8")
    a("s_add_u32 s54, s54, s44")
    a("v_mov_b32 v10, s54")
    a("v_mov_b32 v11, 16")
    stamp(a, "P3 poll")
    poll(a, "v10", "v11", 1)
    stamp(a, "P3 go")
    vm.n = 0
    for t in range(3): dma_ids[t] = 0
    x_ids = []
    for ks in range(32):
        if ks % 4 == 0: a(f"s_mov_b32 s36, {(ks//4)*4096}")
        x_ids.append(vm.issue(f"buffer_load_dwordx4 {ar(4*ks,4)}, {vL16}, s[20:23], s36 offen offset:{(ks%4)*1024}{SC}"))
        if ks == 7:
            st_ids = [vm.issue(f"buffer_load_dwordx2 {vr(T+2*k,2)}, v6, s[28:31], 0 offen offset:{k*256}{SC}") for k in range(8)]
    p3_dma(a, vm, 3, dma_ids)
    p3_dma(a, vm, 4, dma_ids)
    stamp(a, "P3 loads issued")
    def stats_code():
        L = []
        for k in (4, 2, 1):
            for i in range(k):
                L.append(f"v_add_f32 v{T+2*i}, v{T+2*i}, v{T+2*(i+k)}")
                L.append(f"v_add_f32 v{T+2*i+1}, v{T+2*i+1}, v{T+2*(i+k)+1}")
        L += [f"v_mov_b32 v{T+2}, v{T}", f"v_mov_b32 v{T+3}, v{T+1}", "s_nop 1",
              f"v_permlane32_swap_b32 v{T}, v{T+2}", f"v_permlane32_swap_b32 v{T+1}, v{T+3}", "s_nop 0",
              f"v_add_f32 v{T}, v{T}, v{T+2}", f"v_add_f32 v{T+1}, v{T+1}, v{T+3}",
              f"v_mul_f32 v{T}, 0x3b000000, v{T}", f"v_mul_f32 v{T+1}, 0x3b000000, v{T+1}",
              f"v_fma_f32 v{T+1}, -v{T}, v{T}, v{T+1}",
              f"v_add_f32 v{vQ}, 0x3727c5ac, v{T+1}",
              f"v_rsq_f32 v{vC1}, v{vQ}",
              f"v_sub_f32 v{T+2}, 0, v{T}",
              f"v_mul_f32 v{vC1}, 0xbfb8aa3b, v{vC1}",
              f"v_cvt_pk_bf16_f32 v{T+3}, v{T+2}, v{T+2}",
              f"v_and_b32 v{T+4}, 0xffff0000, v{T+3}",
              f"v_sub_f32 v{T+4}, v{T+2}, v{T+4}",
              f"v_cvt_pk_bf16_f32 v{T+4}, v{T+4}, v{T+4}",
              f"v_and_b32 v{T+4}, 0xffff, v{T+4}",
              "v_cmp_gt_u32 vcc, 32, v0",
              f"v_mov_b32 v{MB+2}, 0", f"v_mov_b32 v{MB+3}, 0",
              f"v_cndmask_b32 v{MB}, 0, v{T+3}, vcc", f"v_cndmask_b32 v{MB+1}, 0, v{T+4}, vcc"]
        return [(4, x) for x in L]
    order = []
    for ks in range(32): order += [(0, ks), (1, ks), (2, ks)]
    for t in range(3, 7): order += [(t, ks) for ks in range(32)]
    N = len(order)
    last_use = {}
    for k, (t, ks) in enumerate(order): last_use[t] = k
    def wread(k):
        t, ks = order[k]
        off = (t % NSLOT)*32768 + ks*1024
        a(f"ds_read_b128 {vr(WR+4*(k%NWR),4)}, {vWb[off >> 16]} offset:{off & 0xffff}")
    def epi(t):
        A = ACC + 16*t
        E = T
        L = []
        for i in range(8): L.append((4, f"v_mul_f32 v{E+i}, v{vC1}, v{A+i}"))
        for i in range(8): L.append((8, f"v_exp_f32 v{E+i}, v{E+i}"))
        for i in range(8): L.append((4, f"v_mul_f32 v{E+8+i}, v{A+i}, v{A+8+i}"))
        for i in range(8): L.append((4, f"v_fma_f32 v{E+i}, v{E+i}, v{vQ}, v{vQ}"))
        for i in range(8): L.append((8, f"v_rcp_f32 v{E+i}, v{E+i}"))
        for i in range(8): L.append((4, f"v_mul_f32 v{E+8+i}, v{E+8+i}, v{E+i}"))
        for p in range(4): L.append((4, f"v_cvt_pk_bf16_f32 v{E+16+p}, v{E+8+2*p}, v{E+8+2*p+1}"))
        L.append((8, "s_nop 1"))
        L.append((4, f"v_permlane32_swap_b32 v{E+16}, v{E+18}"))
        L.append((4, f"v_permlane32_swap_b32 v{E+17}, v{E+19}"))
        L.append((4, ("ST", f"buffer_store_dwordx4 {vr(E+16,4)}, {vL16}, s[48:51], {'0' if t < 4 else 's38'} offen offset:{(t%4)*1024}{SC}")))
        return L
    pending = []
    def emit(budget, k):
        while pending and budget > 0 and pending[0][0] <= k:
            _, cost, x = pending.pop(0)
            if isinstance(x, tuple):
                if x[0] == "ST": vm.issue(x[1])
                elif x[0] == "DMA":
                    t, half, i = x[1:]
                    if i == 0:
                        a(f"s_add_u32 m0, s34, {(t % NSLOT)*32768 + half*4096}")
                        a(f"s_add_u32 s35, s34, {t*32768 + half*4096}")
                    dma_ids[t] = vm.issue(f"buffer_load_dwordx4 {vL16}, s[16:19], s35 offen offset:{i*1024}{SC} lds")
                elif x[0] == "VMW": vm.wait(x[1]())
            else: a(x)
            budget -= cost
    PF = NWR - 1
    ready = {0, 1, 2}
    a(f"s_waitcnt vmcnt({vm.n})")
    a("s_barrier")
    for k in range(PF): wread(k)
    nread = PF
    dmaq = []
    for k, (t, ks) in enumerate(order):
        if k == 97:
            a("s_barrier")
            for n_, (tt, half, i) in enumerate([(tt, half, i) for tt in (5, 6) for half in range(2) for i in range(4)]):
                dmaq.append((k + 1 + 2*n_, ("DMA", tt, half, i)))
        if k == 24:
            pending.append((k, 4, ("VMW", lambda: st_ids[-1])))
            for c, x in stats_code(): pending.append((k, c, x))
        if nread < N:
            tn = order[nread][0]
            if tn not in ready:
                vm.wait(dma_ids[tn]); a("s_barrier"); ready.add(tn)
            wread(nread); nread += 1
        if k % 2 == 0 or nread >= N or True:
            a(f"s_waitcnt lgkmcnt({nread - 1 - k})")
        if t == 0: vm.wait(x_ids[ks])
        A = ACC + 16*t
        a(f"v_mfma_f32_32x32x16_bf16 {vr(A,16)}, {vr(WR+4*(k%NWR),4)}, {ar(4*ks,4)}, {'0' if ks == 0 else vr(A,16)}")
        if k == last_use[t]:
            a(f"v_mfma_f32_32x32x16_bf16 {vr(A,16)}, {vr(CSR+4*t,4)}, {vr(MB,4)}, {vr(A,16)}")
            for c, x in epi(t): pending.append((k + 4, c, x))
        budget = 12
        if dmaq and dmaq[0][0] <= k:
            _, (_, tt, half, i) = dmaq.pop(0)
            if i == 0:
                a(f"s_add_u32 m0, s34, {(tt % NSLOT)*32768 + half*4096}")
                a(f"s_add_u32 s35, s34, {tt*32768 + half*4096}")
            dma_ids[tt] = vm.issue(f"buffer_load_dwordx4 {vL16}, s[16:19], s35 offen offset:{i*1024}{SC} lds")
            budget = 4
        emit(budget, k)
    stamp(a, "P3 main done")
    a.nop(12)
    emit(10**9, 10**9)
    stamp(a, "P3 stores issued")
    a("s_lshr_b32 s54, s14, 2")
    a("s_lshl_b32 s54, s54, 8")
    a("s_add_u32 s54, s54, s45")
    a("v_mov_b32 v4, s54")

P4D = 10
def p4_prefetch_WD(a, vm):
    t1_roles(a)
    a("s_lshl_b32 s54, s13, 1")
    a("s_add_u32 s54, s54, s50")
    a("s_mul_i32 s54, s54, 114688")
    a(f"s_add_u32 s54, s54, {hex(WD)}")
    srd(a, 16, 4, "s54", 114688)
    a("s_lshl_b32 s33, s50, 12")
    a("s_lshl_b32 s55, s51, 11")
    a("s_add_u32 s33, s33, s55")
    for s in range(P4D):
        a(f"s_add_u32 m0, s33, {s*16384}")
        a(f"s_add_u32 s32, s55, {s*4096}")
        for i in range(2):
            vm.issue(f"buffer_load_dwordx4 {vL16}, s[16:19], s32 offen offset:{i*1024}{SC} lds")

def gen_P4(a):
    vm = VM(a)
    D = P4D
    RING = D*16384
    vA, vB, vAc, vBc = "v8", "v9", "v10", "v11"
    vR0, vR1, vO0, vO1, vS = "v12", "v13", "v14", "v15", "v16"
    X, Y, ACC, RES = 28, 60, 92, 108
    t1_roles(a)
    a("s_lshl_b32 s36, s13, 1")
    a("s_add_u32 s52, s36, s50")
    a("s_lshl_b32 s37, s11, 3")
    a("s_lshl_b32 s38, s14, 1")
    a("s_add_u32 s37, s37, s38")
    a("s_add_u32 s53, s37, s51")
    resid_addr(a, "s53", "s52", "s11", "v17", "v18", vS, "v19", "v20", None)
    a(f"v_mov_b32 {vR0}, v17")
    a(f"v_add_u32 {vR1}, 1024, v17")
    a("s_cmp_eq_u32 s41, 0")
    a("s_cselect_b64 vcc, -1, 0")
    a("s_cselect_b32 s56, 1024, 32")
    a(f"v_cndmask_b32 {vO0}, v18, v17, vcc")
    a(f"v_add_u32 {vO1}, s56, {vO0}")
    srd(a, 20, 4, "s42", XSZ)
    a(f"buffer_load_dwordx4 {vr(RES,4)}, {vR0}, s[20:23], 0 offen{SC}")
    a(f"buffer_load_dwordx4 {vr(RES+4,4)}, {vR1}, s[20:23], 0 offen{SC}")
    a("s_add_u32 s24, s4, s43"); a("s_addc_u32 s25, s5, 0")
    a("s_cmp_eq_u32 s41, 0")
    a("s_cselect_b32 s24, s24, s8"); a("s_cselect_b32 s25, s25, s9")
    a(f"s_mov_b32 s26, {hex(XSZ)}"); a(f"s_mov_b32 s27, {hex(SRD3)}")
    srd(a, 28, 4, "s44", 0x40000)
    a("s_lshl_b32 s54, s50, 12")
    a(f"v_add_u32 {vA}, s54, {vL16}")
    a("s_lshl_b32 s54, s51, 12")
    a("s_add_u32 s54, s54, 8192")
    a(f"v_add_u32 {vB}, s54, {vL16}")
    a("s_add_u32 s54, s37, s50")
    a("s_mul_i32 s54, s54, 114688")
    a("s_add_u32 s54, s54, s40")
    srd(a, 20, 4, "s54", 114688)
    a("s_lshl_b32 s33, s50, 12")
    a("s_lshl_b32 s55, s51, 11")
    a("s_add_u32 s33, s33, s55")
    for i in range(16): a(f"v_mov_b32 v{ACC+i}, 0")
    a("s_lshl_b32 s54, s11, 1")
    a("s_lshr_b32 s56, s14, 1")
    a("s_add_u32 s54, s54, s56")
    a("s_lshl_b32 s54, s54, 8")
    a("s_add_u32 s54, s54, s45")
    a("v_mov_b32 v4, s54")
    a("v_mov_b32 v5, 16")
    stamp(a, "P4 poll")
    poll(a, "v4", "v5", 1)
    stamp(a, "P4 go")
    idb = {}
    for s in range(D):
        a(f"s_add_u32 m0, s33, {s*16384 + 8192}")
        a(f"s_add_u32 s32, s55, {s*4096}")
        for i in range(2):
            idb[s] = vm.issue(f"buffer_load_dwordx4 {vL16}, s[20:23], s32 offen offset:{i*1024}{SC} lds")
    def reads(R, va, vb):
        for k in range(4):
            a(f"ds_read_b128 {vr(R+4*k,4)}, {va} offset:{k*1024}")
            a(f"ds_read_b128 {vr(R+16+4*k,4)}, {vb} offset:{k*1024}")
    def mfmas(M):
        for k in range(4):
            a(f"v_mfma_f32_32x32x16_bf16 {vr(ACC,16)}, {vr(M+4*k,4)}, {vr(M+16+4*k,4)}, {vr(ACC,16)}")
    sets = [X, Y]
    def dma_static(t):
        slot = t % D
        a(f"s_add_u32 m0, s33, {slot*16384}")
        a(f"s_add_u32 s32, s55, {t*4096}")
        for i in range(2): vm.issue(f"buffer_load_dwordx4 {vL16}, s[16:19], s32 offen offset:{i*1024}{SC} lds")
        a(f"s_add_u32 m0, s33, {slot*16384 + 8192}")
        a("s_nop 0")
        for i in range(2): idb[t] = vm.issue(f"buffer_load_dwordx4 {vL16}, s[20:23], s32 offen offset:{i*1024}{SC} lds")
    for s in range(D):
        vm.wait(idb[s])
        a("s_barrier")
        if s == 0: stamp(a, "P4 first data")
        if s >= 1: dma_static(s + D - 1)
        a(f"v_add_u32 {vAc}, {s*16384}, {vA}")
        a(f"v_add_u32 {vBc}, {s*16384}, {vB}")
        reads(sets[s & 1], vAc, vBc)
        if s >= 1: mfmas(sets[(s - 1) & 1])
        a("s_waitcnt lgkmcnt(0)")
    a("s_mov_b32 s35, 0")
    a(f"s_add_u32 s34, s33, {((2*D - 1) % D)*16384}")
    a(f"s_add_u32 s32, s55, {(2*D - 1)*4096}")
    a(f"s_mov_b32 s36, {(28 - D)//2}")
    L = uid("p4loop")
    a.label(L)
    for par in range(2):
        a(f"s_waitcnt vmcnt({(D-2)*4})")
        a("s_barrier")
        a("s_mov_b32 m0, s34")
        a("s_add_u32 s37, s34, 8192")
        for i in range(2): a(f"buffer_load_dwordx4 {vL16}, s[16:19], s32 offen offset:{i*1024}{SC} lds")
        a("s_mov_b32 m0, s37")
        a("s_add_u32 s34, s34, 16384")
        for i in range(2): a(f"buffer_load_dwordx4 {vL16}, s[20:23], s32 offen offset:{i*1024}{SC} lds")
        a("s_add_u32 s32, s32, 4096")
        a(f"s_cmp_ge_u32 s34, {RING}")
        a(f"s_cselect_b32 s57, {RING}, 0")
        a("s_sub_u32 s34, s34, s57")
        a(f"v_add_u32 {vAc}, s35, {vA}")
        a(f"v_add_u32 {vBc}, s35, {vB}")
        a("s_add_u32 s35, s35, 16384")
        a(f"s_cmp_ge_u32 s35, {RING}")
        a(f"s_cselect_b32 s57, {RING}, 0")
        a("s_sub_u32 s35, s35, s57")
        reads(sets[(D + par) & 1], vAc, vBc)
        mfmas(sets[(D + par - 1) & 1])
        a("s_waitcnt lgkmcnt(0)")
    a("s_sub_u32 s36, s36, 1")
    a("s_cmp_lg_u32 s36, 0")
    a(f"s_cbranch_scc1 {L}")
    mfmas(sets[(28 - 1) & 1])
    a("s_waitcnt vmcnt(0)")
    stamp(a, "P4 main done")
    a.nop(4)
    resid_epilogue(a, ACC, RES, X, Y, vO0, vO1, vS, "s[24:27]", "s[28:31]", "s_cmp_lg_u32 s47, 0")
    stamp(a, "P4 stores issued")
    a("s_lshl_b32 s54, s11, 2")
    a("s_add_u32 s54, s54, s14")
    a("s_lshl_b32 s54, s54, 8")
    a("s_add_u32 s54, s54, s46")
    a("v_mov_b32 v4, s54")

SU_WF = 132096
SU_WD = 146432
def setup_loads(a, vm):
    a("s_and_b32 s54, s2, 15")
    a("s_lshr_b32 s55, s2, 4")
    a("s_mul_i32 s56, s54, 224")
    a("s_mul_i32 s57, s55, 32*3584")
    a("s_add_u32 s56, s56, s57")
    srd(a, 24, 64, 0, 512*3584)
    srd(a, 28, 66, 0, 512*3584)
    a("s_movk_i32 s58, 4682")
    a("s_movk_i32 s59, 3584")
    for n in range(4):
        E = uid("su")
        if n == 3:
            a("s_cmp_ge_u32 s10, 2"); a(f"s_cbranch_scc1 {E}")
        a(f"s_add_u32 s36, s10, {4*n}")
        a("s_cmp_ge_u32 s36, 7")
        a("s_cselect_b32 s37, 7, 0")
        a("s_sub_u32 s37, s36, s37")
        a("s_lshl_b32 s38, s37, 6")
        a("v_add_u32 v4, s38, v0")
        a("v_mul_u32_u24 v5, s58, v4")
        a("v_lshrrev_b32 v5, 16, v5")
        a("v_mul_u32_u24 v6, 14, v5")
        a("v_sub_u32 v6, v4, v6")
        a("v_mul_u32_u24 v5, s59, v5")
        a("v_lshl_add_u32 v5, v6, 4, v5")
        a("s_lshl_b32 s38, s36, 10")
        a(f"s_add_u32 m0, s38, {SU_WF}")
        a("s_cmp_ge_u32 s36, 7")
        U, J = uid("suu"), uid("suj")
        a(f"s_cbranch_scc1 {U}")
        vm.issue("buffer_load_dwordx4 v5, s[24:27], s56 offen lds")
        a(f"s_branch {J}")
        a.label(U)
        a("buffer_load_dwordx4 v5, s[28:31], s56 offen lds")
        a.label(J)
        if n == 3:
            vm.n -= 1
            a.label(E)
    E = uid("su")
    a("s_cmp_ge_u32 s2, 224"); a(f"s_cbranch_scc1 {E}")
    srd(a, 24, 68, 0, 1792*1024)
    a("s_lshr_b32 s54, s2, 1")
    a("s_lshl_b32 s54, s54, 14")
    a("s_and_b32 s55, s2, 1")
    a("s_lshl_b32 s55, s55, 9")
    a("s_add_u32 s54, s54, s55")
    a("s_lshl_b32 s55, s10, 12")
    a("s_add_u32 s54, s54, s55")
    a("v_lshrrev_b32 v4, 5, v0")
    a("v_and_b32 v5, 31, v0")
    a("v_lshlrev_b32 v5, 4, v5")
    a("v_lshl_add_u32 v5, v4, 10, v5")
    a("s_lshl_b32 s55, s10, 11")
    for i in range(2):
        a(f"s_add_u32 m0, s55, {SU_WD + i*1024}")
        a(f"s_add_u32 s36, s54, {i*2048}")
        a("buffer_load_dwordx4 v5, s[24:27], s36 offen lds")
    a.label(E)

def setup_process(a):
    a("v_lshrrev_b32 v4, 4, v0")
    a("v_lshrrev_b32 v5, 1, v4")
    a("v_lshlrev_b32 v5, 3, v5")
    a("v_bfe_u32 v6, v0, 2, 2")
    a("v_add_u32 v5, v5, v6")
    a("v_and_b32 v4, 1, v4")
    a("v_and_b32 v6, 3, v0")
    a("v_mul_u32_u24 v7, 224, v5")
    a("v_mul_u32_u24 v8, 7168, v4") if False else None
    a("s_movk_i32 s54, 7168")
    a("v_mad_u32_u24 v7, v4, s54, v7")
    a("v_lshl_add_u32 v7, v6, 3, v7")
    a("s_lshl_b32 s55, s10, 5")
    a(f"s_add_u32 s55, s55, {SU_WF}")
    a("v_add_u32 v7, s55, v7")
    for i in range(4): a(f"v_mov_b32 v{8+i}, 0x3f803f80")
    srd(a, 24, 4, WF, 0x380000)
    srd(a, 28, 4, CSP, 112*2048)
    a("s_and_b32 s54, s2, 15")
    a("s_mul_i32 s54, s54, 7")
    a("s_lshr_b32 s56, s2, 4")
    a("v_and_b32 v12, 31, v0")
    a("v_lshlrev_b32 v12, 6, v12")
    for x in range(2):
        E = uid("sp")
        if x == 1:
            a("s_cmp_eq_u32 s10, 3"); a(f"s_cbranch_scc1 {E}")
        for ks in range(2):
            R = 16 + 4*ks
            a(f"ds_read_b64_tr_b16 {vr(R,2)}, v7 offset:{ks*16*224 + x*128}")
            a(f"ds_read_b64_tr_b16 {vr(R+2,2)}, v7 offset:{ks*16*224 + 4*224 + x*128}")
        a("s_add_u32 s57, s54, s10")
        if x: a("s_add_u32 s57, s57, 4")
        a("s_lshl_b32 s58, s57, 15")
        a("s_lshl_b32 s59, s56, 11")
        a("s_add_u32 s58, s58, s59")
        a("s_waitcnt lgkmcnt(0)")
        for ks in range(2):
            R = 16 + 4*ks
            a(f"buffer_store_dwordx4 {vr(R,4)}, {vL16}, s[24:27], s58 offen offset:{ks*1024}{SC}")
            a(f"v_mfma_f32_32x32x16_bf16 v[32:47], v[8:11], {vr(R,4)}, {'0' if ks == 0 else 'v[32:47]'}")
        a("s_lshl_b32 s57, s57, 11")
        a("s_lshl_b32 s59, s56, 2")
        a("s_add_u32 s57, s57, s59")
        a.nop(12)
        a("s_mov_b64 exec, 0xffffffff")
        a(f"buffer_store_dword v32, v12, s[28:31], s57 offen{SC}")
        a("s_mov_b64 exec, -1")
        if x == 1: a.label(E)
    E = uid("sp")
    a("s_cmp_ge_u32 s2, 224"); a(f"s_cbranch_scc1 {E}")
    a("v_lshlrev_b32 v7, 9, v5")
    a("v_lshl_add_u32 v7, v4, 5, v7")
    a("v_lshl_add_u32 v7, v6, 3, v7")
    a("s_lshl_b32 s55, s10, 7")
    a(f"s_add_u32 s55, s55, {SU_WD}")
    a("v_add_u32 v7, s55, v7")
    srd(a, 24, 4, WD, 0x1C0000)
    for x in range(2):
        R = 16 + 4*x
        a(f"ds_read_b64_tr_b16 {vr(R,2)}, v7 offset:{x*64}")
        a(f"ds_read_b64_tr_b16 {vr(R+2,2)}, v7 offset:{4*512 + x*64}")
    a("s_and_b32 s54, s2, 1")
    a("s_lshl_b32 s54, s54, 3")
    a("s_lshl_b32 s55, s10, 1")
    a("s_add_u32 s54, s54, s55")
    a("s_mul_i32 s54, s54, 112")
    a("s_lshr_b32 s55, s2, 1")
    a("s_add_u32 s54, s54, s55")
    a("s_lshl_b32 s54, s54, 10")
    a("s_add_u32 s55, s54, 114688")
    a("s_waitcnt lgkmcnt(0)")
    a(f"buffer_store_dwordx4 v[16:19], {vL16}, s[24:27], s54 offen{SC}")
    a(f"buffer_store_dwordx4 v[20:23], {vL16}, s[24:27], s55 offen{SC}")
    a.label(E)

def build():
    a = Asm()
    name = "interleave_layers__spectral_fnet__swiglu_ffn__prompt_kernel"
    hdr = open("interleave_layers__spectral_fnet__swiglu_ffn__prompt.s.ref").read().split("\n")
    hdr = [l for l in hdr if l.startswith(";") and "@launch" not in l and "Override launch" not in l and "grid=ceil" not in l]
    for l in hdr: a.raw(l)
    a.raw("; @launch grid=(256,1,1) block=(256,1,1) lds=163840")
    a.raw('.amdgcn_target "amdgcn-amd-amdhsa--gfx950"')
    a.raw(".text")
    a.raw(f".globl {name}"); a.raw(".p2align 8"); a.raw(f".type {name},@function"); a.raw(f"{name}:")
    a("s_cmp_ge_u32 s2, 256"); a("s_cbranch_scc1 k_exit")
    a(f"s_load_dwordx2 s[4:5], s[0:1], {KA_WS}")
    a(f"s_load_dwordx2 s[6:7], s[0:1], {KA_X0}")
    a(f"s_load_dwordx4 s[60:63], s[0:1], {KA_HRE}")
    a(f"s_load_dwordx4 s[64:67], s[0:1], {KA_WG}")
    a(f"s_load_dwordx4 s[68:71], s[0:1], {KA_WDN}")
    a(f"s_load_dwordx2 s[96:97], s[0:1], {KA_DBG}")
    a("v_lshrrev_b32 v1, 6, v0")
    a("v_and_b32 v0, 63, v0")
    a("v_readfirstlane_b32 s10, v1")
    a(f"v_lshlrev_b32 {vL16}, 4, v0")
    a("s_and_b32 s11, s2, 7")
    a("s_lshr_b32 s12, s2, 3")
    a("s_mov_b32 s73, 0")
    if PROF: a("v_mov_b32 v255, 0")
    a("s_waitcnt lgkmcnt(0)")
    a("s_mov_b32 s8, s70"); a("s_mov_b32 s9, s71")
    if PROF:
        a("s_memrealtime s[92:93]"); a("s_waitcnt lgkmcnt(0)"); a("v_writelane_b32 v255, s92, 62")
    stamp(a, "entry")
    Z = uid("z")
    a("s_cmp_lg_u32 s2, 0"); a(f"s_cbranch_scc1 {Z}")
    a("s_cmp_lg_u32 s10, 3"); a(f"s_cbranch_scc1 {Z}")
    a("v_lshlrev_b32 v2, 8, v0")
    a(f"v_add_u32 v2, {hex(CNT)}, v2")
    a("v_mov_b32 v3, 0")
    for i in range(5):
        a("global_store_dword v2, v3, s[4:5] sc1")
        a("v_add_u32 v2, 0x4000, v2")
    a("s_waitcnt vmcnt(0)")
    a("v_mov_b32 v2, 0"); a("v_mov_b32 v3, 1")
    a("s_mov_b64 exec, 1")
    a("global_store_dword v2, v3, s[96:97] sc1")
    a("s_mov_b64 exec, -1")
    a.label(Z)
    su_vm = {}
    def ap(a, vm):
        setup_loads(a, vm)
    mask = gen_P1(a, True, 0, 0, V0, None, C1, after_prologue=ap)
    a("v_mov_b32 v6, 0"); a("v_mov_b32 v7, 1")
    a("s_waitcnt vmcnt(0)")
    poll(a, "v6", "v7", 1, base="s[96:97]")
    signal(a, "v4", mask)
    stamp(a, "P1 signalled")
    vmx = VM(a)
    p2_prefetch_G_deferred = True
    setup_process(a)
    a("s_lshr_b32 s54, s2, 4")
    a("s_lshl_b32 s54, s54, 8")
    a(f"s_add_u32 s54, s54, {hex(cnt_off(CS))}")
    a("v_mov_b32 v4, s54")
    signal(a, "v4")
    stamp(a, "setup signalled")
    a("s_mov_b32 s72, 0")
    a("s_lshl_b32 s54, s11, 2")
    a("s_lshr_b32 s55, s12, 3")
    a("s_add_u32 s54, s54, s55")
    a("s_lshl_b32 s54, s54, 8")
    a(f"s_add_u32 s54, s54, {hex(cnt_off(CG))}")
    a("v_mov_b32 v4, s54"); a("v_mov_b32 v5, 8")
    poll(a, "v4", "v5", 1)
    stamp(a, "CG seen")
    a.label("layer_loop")
    INLOOP[0] = True
    p2_prefetch_G(a, VM(a))
    sel(a, "s40", V0, V1); sel(a, "s41", 1, 0); sel(a, "s42", X2, X2); sel(a, "s43", X1, X3); sel(a, "s44", STA, STC)
    sel(a, "s45", cnt_off(C1), cnt_off(C1+64)); sel(a, "s46", cnt_off(C2), cnt_off(C2+16))
    gen_P2(a)
    signal(a, "v4")
    stamp(a, "P2 signalled")
    Lskip = uid("cs")
    a("s_cmp_lg_u32 s72, 0"); a(f"s_cbranch_scc1 {Lskip}")
    a("v_lshlrev_b32 v4, 8, v0")
    a(f"v_add_u32 v4, {hex(cnt_off(CS))}, v4")
    a("v_mov_b32 v5, 16")
    poll(a, "v4", "v5", 16)
    stamp(a, "CS seen")
    a.label(Lskip)
    vm3 = VM(a); ids3 = {}
    p3_prefetch_W(a, vm3, ids3)
    sel(a, "s40", X1, X3); sel(a, "s42", STA, STC); sel(a, "s43", H0, H1)
    sel(a, "s44", cnt_off(C2), cnt_off(C2+16)); sel(a, "s45", cnt_off(C3), cnt_off(C3+16))
    gen_P3(a, vm3, ids3)
    signal(a, "v4")
    stamp(a, "P3 signalled")
    p4_prefetch_WD(a, VM(a))
    sel(a, "s40", H0, H1); sel(a, "s41", 0, 1); sel(a, "s42", X1, X3); sel(a, "s43", X2, X2); sel(a, "s44", STB, STB)
    sel(a, "s45", cnt_off(C3), cnt_off(C3+16)); sel(a, "s46", cnt_off(C4), cnt_off(C4))
    a("s_mov_b32 s47, s72")
    gen_P4(a)
    a("s_cmp_lg_u32 s72, 0"); a("s_cbranch_scc1 k_done")
    signal(a, "v4")
    stamp(a, "P4 signalled")
    INLOOP[0] = False
    p1_prefetch_F(a, VM(a))
    mask = gen_P1(a, False, X2, STB, V1, C4, C1+64)
    signal(a, "v4", mask)
    stamp(a, "P1b signalled")
    a("s_mov_b32 s72, 1")
    a("s_branch layer_loop")
    a.label("k_done")
    if PROF:
        a("s_waitcnt vmcnt(0)")
        a("s_memtime s[92:93]"); a("s_waitcnt lgkmcnt(0)"); a("v_writelane_b32 v255, s92, 61")
        a("s_memrealtime s[92:93]"); a("s_waitcnt lgkmcnt(0)"); a("v_writelane_b32 v255, s92, 63")
        a("s_lshl_b32 s54, s2, 2"); a("s_add_u32 s54, s54, s10"); a("s_lshl_b32 s54, s54, 8")
        a(f"s_add_u32 s54, s54, {hex(TS)}")
        a("v_lshlrev_b32 v2, 2, v0"); a("v_add_u32 v2, s54, v2")
        a("global_store_dword v2, v255, s[4:5]")
    a.label("k_exit")
    a("s_endpgm")
    a.raw('.section .rodata,"a"')
    a.raw(f""".p2align 6
.amdhsa_kernel {name}
  .amdhsa_next_free_vgpr 512
  .amdhsa_next_free_sgpr 102
  .amdhsa_accum_offset 256
  .amdhsa_group_segment_fixed_size 0
  .amdhsa_kernarg_size 96
  .amdhsa_user_sgpr_count 2
  .amdhsa_user_sgpr_kernarg_segment_ptr 1
  .amdhsa_system_sgpr_workgroup_id_x 1
  .amdhsa_float_denorm_mode_32 3
  .amdhsa_float_denorm_mode_16_64 3
.end_amdhsa_kernel
""")
    return a.text()

if __name__ == "__main__":
    if "--prof" in sys.argv:
        PROF = True; sys.argv.remove("--prof")
    t = build()
    out = sys.argv[1] if len(sys.argv) > 1 else "p.s"
    open(out, "w").write(t)
    if PROF: open(out + ".stamps", "w").write("\n".join(STAMPS))
    probs = check_hazards(t)
    print("lines", t.count("\n"), "bytes", len(t), "hazards", len(probs))
```

```python
import sys
from asmlib import Asm, vr, ar, sr, check_hazards

X1, X2, X3 = 0x0, 0x200000, 0x400000
V0, V1 = 0x600000, 0xA00000
GT  = 0xE00000
WF  = 0x1000000
WD  = 0x1400000
H0, H1 = 0x1600000, 0x1D00000
CSP = 0x2400000
STA, STB, STC = 0x2440000, 0x2480000, 0x24C0000
CNT = 0x2500000
TS  = 0x2600000
XSZ = 0x200000
C1, C2, C3, C4, CS, CG = 0, 128, 160, 192, 224, 240
NCNT = 272
KA_X0, KA_HRE, KA_HIM, KA_WG, KA_WU, KA_WDN, KA_OUT, KA_DBG, KA_WS = 0, 24, 32, 48, 56, 64, 72, 80, 88
SRD3 = 0x00020000
PROF = False
DBGT = False
SC = " sc1"
vL16 = "v1"

class VM:
    def __init__(self, a): self.a = a; self.n = 0
    def issue(self, text):
        self.a(text); self.n += 1; return self.n
    def wait(self, opid):
        k = self.n - opid
        assert 0 <= k <= 63, k
        self.a(f"s_waitcnt vmcnt({k})")

_uid = [0]
def uid(p):
    _uid[0] += 1
    return f"{p}_{_uid[0]}"
_stamp_i = [0]
STAMPS = []
INLOOP = [False]
def stamp(a, label):
    if not PROF: return
    i = _stamp_i[0]
    a("s_memtime s[92:93]")
    a("s_waitcnt lgkmcnt(0)")
    if INLOOP[0]:
        _stamp_i[0] += 2
        STAMPS.append(label + " L0"); STAMPS.append(label + " L1")
        A, B = uid("st"), uid("st")
        a("s_cmp_lg_u32 s72, 0"); a(f"s_cbranch_scc1 {A}")
        a(f"v_writelane_b32 v255, s92, {i}"); a(f"s_branch {B}")
        a.label(A); a(f"v_writelane_b32 v255, s92, {i+1}"); a.label(B)
    else:
        _stamp_i[0] += 1
        STAMPS.append(label)
        a(f"v_writelane_b32 v255, s92, {i}")

def srd(a, d, base_lo, off, size):
    if isinstance(off, int) and off == 0:
        a(f"s_mov_b32 s{d}, s{base_lo}"); a(f"s_mov_b32 s{d+1}, s{base_lo+1}")
    else:
        a(f"s_add_u32 s{d}, s{base_lo}, {off if not isinstance(off,int) else hex(off)}")
        a(f"s_addc_u32 s{d+1}, s{base_lo+1}, 0")
    a(f"s_mov_b32 s{d+2}, {size if not isinstance(size,int) else hex(size)}")
    a(f"s_mov_b32 s{d+3}, {hex(SRD3)}")

def sel(a, dst, v0, v1):
    if v0 == v1: a(f"s_mov_b32 {dst}, {hex(v0)}"); return
    a(f"s_mul_i32 {dst}, s72, {hex(v1 - v0) if v1 >= v0 else str(v1 - v0)}")
    a(f"s_add_u32 {dst}, {dst}, {hex(v0)}")

def token_of_c(a, vdst, vc, vtmp):
    a(f"v_lshrrev_b32 {vtmp}, 4, {vc}")
    a(f"v_lshlrev_b32 {vtmp}, 2, {vtmp}")
    a(f"v_and_b32 {vdst}, 3, {vc}")
    a(f"v_add_u32 {vdst}, {vdst}, {vtmp}")
    a(f"v_lshlrev_b32 {vdst}, 8, {vdst}")
    a(f"v_bfe_u32 {vtmp}, {vc}, 2, 2")
    a(f"v_lshl_add_u32 {vdst}, {vtmp}, 3, {vdst}")


def poll(a, vaddr, vtarget, nlanes, base="s[4:5]"):
    L, D, S = uid("poll"), uid("polld"), uid("polls")
    a("s_cmp_lg_u32 s10, 0")
    a(f"s_cbranch_scc1 {S}")
    a("s_cmp_lg_u32 s73, 0")
    a(f"s_cbranch_scc1 {S}")
    a(f"s_mov_b64 exec, {hex((1 << nlanes) - 1)}")
    a("s_mov_b32 s74, 0")
    a.label(L)
    a(f"global_load_dword v2, {vaddr}, {base} sc1")
    a("s_add_u32 s74, s74, 1")
    a("s_waitcnt vmcnt(0)")
    a(f"v_cmp_gt_u32 vcc, {vtarget}, v2")
    a(f"s_cbranch_vccz {D}")
    a("s_cmp_lt_u32 s74, 40000")
    a(f"s_cbranch_scc1 {L}")
    a("s_mov_b32 s73, 1")
    a.label(D)
    a("s_mov_b64 exec, -1")
    a.label(S)
    a("s_barrier")

def signal(a, vaddr, nlanes_mask_sreg=None, npend=0):
    S = uid("sig")
    a(f"s_waitcnt vmcnt({npend})")
    a("s_barrier")
    a("s_cmp_lg_u32 s10, 0")
    a(f"s_cbranch_scc1 {S}")
    if nlanes_mask_sreg is None: a("s_mov_b64 exec, 1")
    else: a(f"s_mov_b64 exec, {nlanes_mask_sreg}")
    a("v_mov_b32 v2, 1")
    a(f"global_atomic_add {vaddr}, v2, s[4:5] sc1")
    a("s_mov_b64 exec, -1")
    a.label(S)

def cnt_off(idx): return CNT + idx*256

def resid_addr(a, s_tau, s_dt32, s_r, vXF, vRM, vS, vt1, vt2, vt3):
    a(f"s_lshl_b32 s54, {s_tau}, 15")
    a(f"s_lshl_b32 s55, {s_dt32}, 11")
    a("s_add_u32 s54, s54, s55")
    a(f"v_add_u32 {vXF}, s54, {vL16}")
    a(f"v_and_b32 {vt1}, 31, v0")
    token_of_c(a, vRM, vt1, vt2)
    a(f"s_and_b32 s55, {s_tau}, 7")
    a("s_lshl_b32 s55, s55, 5")
    a(f"s_add_u32 s55, s55, {s_r}")
    a(f"v_add_u32 {vRM}, s55, {vRM}")
    a(f"v_lshlrev_b32 {vRM}, 10, {vRM}")
    a(f"v_lshrrev_b32 {vt2}, 5, v0")
    a(f"v_lshl_add_u32 {vRM}, {vt2}, 4, {vRM}")
    a(f"s_lshl_b32 s55, {s_dt32}, 6")
    a(f"v_add_u32 {vRM}, s55, {vRM}")
    a(f"s_lshl_b32 s54, {s_tau}, 12")
    a(f"s_lshl_b32 s55, {s_dt32}, 8")
    a("s_add_u32 s54, s54, s55")
    a(f"v_lshlrev_b32 {vS}, 3, {vt1}")
    a(f"v_add_u32 {vS}, s54, {vS}")

def resid_epilogue(a, ACC, RES, U, P, vO0, vO1, vS, sOut, sSt, stats_cond):
    a(f"v_permlane32_swap_b32 v{RES}, v{RES+2}")
    a(f"v_permlane32_swap_b32 v{RES+1}, v{RES+3}")
    a(f"v_permlane32_swap_b32 v{RES+4}, v{RES+6}")
    a(f"v_permlane32_swap_b32 v{RES+5}, v{RES+7}")
    for i in range(8):
        a(f"v_lshlrev_b32 v{U+2*i}, 16, v{RES+i}")
        a(f"v_and_b32 v{U+2*i+1}, 0xffff0000, v{RES+i}")
    for i in range(8):
        a(f"v_pk_add_f32 {vr(ACC+2*i,2)}, {vr(ACC+2*i,2)}, {vr(U+2*i,2)}")
    for i in range(8):
        a(f"v_cvt_pk_bf16_f32 v{P+i}, v{ACC+2*i}, v{ACC+2*i+1}")
    Sx, Qx = P + 8, P + 10
    a(f"v_pk_add_f32 {vr(Sx,2)}, {vr(ACC,2)}, {vr(ACC+2,2)}")
    a(f"v_pk_mul_f32 {vr(Qx,2)}, {vr(ACC,2)}, {vr(ACC,2)}")
    a(f"v_permlane32_swap_b32 v{P}, v{P+2}")
    a(f"v_permlane32_swap_b32 v{P+1}, v{P+3}")
    a(f"v_permlane32_swap_b32 v{P+4}, v{P+6}")
    a(f"v_permlane32_swap_b32 v{P+5}, v{P+7}")
    a(f"v_pk_fma_f32 {vr(Qx,2)}, {vr(ACC+2,2)}, {vr(ACC+2,2)}, {vr(Qx,2)}")
    a(f"buffer_store_dwordx4 {vr(P,4)}, {vO0}, {sOut}, 0 offen{SC}")
    a(f"buffer_store_dwordx4 {vr(P+4,4)}, {vO1}, {sOut}, 0 offen{SC}")
    E = uid("nost")
    if stats_cond is not None:
        a(stats_cond); a(f"s_cbranch_scc1 {E}")
    for i in range(2, 8):
        a(f"v_pk_add_f32 {vr(Sx,2)}, {vr(Sx,2)}, {vr(ACC+2*i,2)}")
        a(f"v_pk_fma_f32 {vr(Qx,2)}, {vr(ACC+2*i,2)}, {vr(ACC+2*i,2)}, {vr(Qx,2)}")
    T = P + 12
    a(f"v_add_f32 v{T}, v{Sx}, v{Sx+1}")
    a(f"v_add_f32 v{T+1}, v{Qx}, v{Qx+1}")
    a(f"v_mov_b32 v{T+2}, v{T}")
    a(f"v_mov_b32 v{T+3}, v{T+1}")
    a.nop(2)
    a(f"v_permlane32_swap_b32 v{T}, v{T+2}")
    a(f"v_permlane32_swap_b32 v{T+1}, v{T+3}")
    a.nop(1)
    a(f"v_add_f32 v{T}, v{T}, v{T+2}")
    a(f"v_add_f32 v{T+1}, v{T+1}, v{T+3}")
    a("s_mov_b64 exec, 0xffffffff")
    a(f"buffer_store_dwordx2 {vr(T,2)}, {vS}, {sSt}, 0 offen{SC}")
    a("s_mov_b64 exec, -1")
    if stats_cond is not None: a.label(E)

P1_STATS = 131072
def p1_roles(a):
    a("s_and_b32 s13, s12, 7")
    a("s_lshr_b32 s14, s12, 3")
    a("s_and_b32 s50, s10, 1")
    a("s_lshr_b32 s51, s10, 1")

def p1_prefetch_F(a, vm):
    p1_roles(a)
    a("v_lshrrev_b32 v2, 3, v0")
    a("v_and_b32 v3, 7, v0")
    a("s_lshl_b32 s54, s13, 5")
    a("s_lshl_b32 s55, s50, 4")
    a("s_add_u32 s54, s54, s55")
    a("s_cmp_eq_u32 s51, 0")
    a("s_cselect_b32 s16, s60, s62"); a("s_cselect_b32 s17, s61, s63")
    a("s_mov_b32 s18, 0x80000"); a(f"s_mov_b32 s19, {hex(SRD3)}")
    a("s_cselect_b32 s56, 0x100, 0")
    for i in range(2):
        a(f"v_add_u32 v4, {8*i}, v2")
        a("v_lshrrev_b32 v5, 1, v4")
        a("v_xor_b32 v5, v5, v3")
        a("v_lshlrev_b32 v5, 4, v5")
        a("v_add_u32 v4, s54, v4")
        a("v_cmp_eq_u32 vcc, 0, v4")
        a("v_mov_b32 v6, s56")
        a.nop(1)
        a("v_cndmask_b32 v4, v4, v6, vcc")
        a(f"v_lshl_add_u32 v{8+i}, v4, 10, v5")
    a("s_lshl_b32 s33, s50, 12")
    a("s_lshl_b32 s55, s51, 11")
    a("s_add_u32 s33, s33, s55")
    for s in range(8):
        for i in range(2):
            a(f"s_add_u32 m0, s33, {s*16384 + 8192 + i*1024}")
            a(f"s_mov_b32 s32, {s*128}")
            vm.issue(f"buffer_load_dwordx4 v{8+i}, s[16:19], s32 offen lds")

def gen_P1(a, layer0, xoff, stoff, voff, c4wait, c1idx, after_prologue=None):
    NST = 8
    vm = VM(a)
    vD = [8, 9]
    vAa = {(0,0,0):10,(0,0,1):11,(0,1,0):12,(0,1,1):13,(1,0,0):14,(1,0,1):15,(1,1,0):16,(1,1,1):17}
    vBa = {(0,0):18,(0,1):19,(1,0):20,(1,1):21}
    vDir, vMir, vSW, vSR = 22, 23, 24, 25
    X, Y = 28, 60
    C0, C1r, S0, S1 = 92, 96, 100, 104
    SA = 108
    RS = 112
    T = 120
    rm = layer0
    if layer0:
        p1_prefetch_F(a, vm)
    p1_roles(a)
    a("v_lshrrev_b32 v2, 3, v0")
    a("v_and_b32 v3, 7, v0")
    a("s_lshl_b32 s54, s14, 1")
    a("s_add_u32 s54, s54, s50")
    if rm:
        a("s_lshl_b32 s55, s54, 5")
        a("s_add_u32 s55, s55, s11")
        a("s_lshl_b32 s57, s51, 4")
        for i in range(2):
            a(f"v_add_u32 v4, {8*i}, v2")
            a("v_add_u32 v4, s57, v4")
            token_of_c(a, "v5", "v4", "v6")
            a("v_add_u32 v5, s55, v5")
            a("v_bfe_u32 v6, v4, 1, 3")
            a("v_xor_b32 v6, v6, v3")
            a("v_lshlrev_b32 v6, 4, v6")
            a(f"v_lshl_add_u32 v{vD[i]}, v5, 10, v6")
        srd(a, 20, 6, 0, XSZ)
        ASTR = 128
    else:
        a("s_lshl_b32 s57, s51, 11")
        for i in range(2):
            a(f"v_add_u32 v{vD[i]}, s57, {vL16}")
            if i: a(f"v_add_u32 v{vD[i]}, 1024, v{vD[i]}")
        a("s_lshl_b32 s55, s11, 3")
        a("s_add_u32 s55, s55, s54")
        a("s_lshl_b32 s55, s55, 15")
        a(f"s_add_u32 s55, s55, {hex(xoff)}")
        srd(a, 20, 4, "s55", 32768)
        ASTR = 4096
    a("s_lshl_b32 s33, s50, 12")
    a("s_lshl_b32 s55, s51, 11")
    a("s_add_u32 s33, s33, s55")
    ids = {}
    def dmaA():
        for s in range(NST):
            for i in range(2):
                a(f"s_add_u32 m0, s33, {s*16384 + i*1024}")
                a(f"s_mov_b32 s32, {s*ASTR}")
                ids[s] = vm.issue(f"buffer_load_dwordx4 v{vD[i]}, s[20:23], s32 offen{'' if rm else SC} lds")
    if rm:
        dmaA()
        if after_prologue: after_prologue(a, vm)
    a("v_and_b32 v2, 15, v0")
    a("v_lshrrev_b32 v3, 4, v0")
    a("v_lshrrev_b32 v4, 1, v2")
    a("s_lshl_b32 s52, s51, 2")
    a("v_add_u32 v5, s52, v3")
    a("v_xor_b32 v6, v5, v4")
    a("v_lshlrev_b32 v6, 4, v6")
    a("v_lshl_add_u32 v6, v2, 7, v6")
    a("v_xor_b32 v7, 64, v6")
    a("s_lshl_b32 s53, s51, 12")
    a("s_add_u32 s53, s53, 8192")
    a(f"v_add_u32 v{vBa[(0,0)]}, s53, v6")
    a(f"v_add_u32 v{vBa[(0,1)]}, s53, v7")
    a("s_lshl_b32 s53, s50, 12")
    if rm:
        for sub in range(2):
            a(f"s_add_u32 s54, s53, {sub*2048}")
            a(f"v_add_u32 v{vAa[(0,sub,0)]}, s54, v6")
            a(f"v_add_u32 v{vAa[(0,sub,1)]}, s54, v7")
    else:
        a("v_lshlrev_b32 v26, 9, v5")
        a("v_lshl_add_u32 v26, v2, 4, v26")
        a("v_xor_b32 v27, 2048, v26")
        for sub in range(2):
            a(f"s_add_u32 s54, s53, {sub*256}")
            a(f"v_add_u32 v{vAa[(0,sub,0)]}, s54, v26")
            a(f"v_add_u32 v{vAa[(0,sub,1)]}, s54, v27")
    for k, r_ in vAa.items():
        if k[0] == 1: a(f"v_add_u32 v{r_}, 0x10000, v{vAa[(0,)+k[1:]]}")
    for k, r_ in vBa.items():
        if k[0] == 1: a(f"v_add_u32 v{r_}, 0x10000, v{vBa[(0,k[1])]}")
    a("s_lshl_b32 s54, s13, 5")
    a("s_lshl_b32 s55, s51, 4")
    a("s_add_u32 s54, s54, s55")
    a("v_add_u32 v4, s54, v2")
    a("v_cmp_eq_u32 s[76:77], 0, v4")
    a("v_sub_u32 v5, 0x200, v4")
    a("v_mov_b32 v6, 0x100")
    a("v_cndmask_b32 v7, v4, v6, s[76:77]")
    a("v_mov_b32 v6, 0")
    a("v_cndmask_b32 v26, v5, v6, s[76:77]")
    a("s_lshl_b32 s54, s11, 2")
    a("s_add_u32 s54, s54, s14")
    a("s_lshl_b32 s54, s54, 10")
    a("s_lshl_b32 s55, s50, 9")
    a("s_add_u32 s54, s54, s55")
    a("v_lshlrev_b32 v6, 19, v3")
    a("v_add_u32 v6, s54, v6")
    for src, dst in (("v7", vDir), ("v26", vMir)):
        a(f"v_lshrrev_b32 v4, 5, {src}")
        a("v_lshlrev_b32 v4, 15, v4")
        a(f"v_and_b32 v5, 31, {src}")
        a("v_lshl_add_u32 v4, v5, 4, v4")
        a(f"v_add_u32 v{dst}, v4, v6") if dst == vDir else a(f"v_add_u32 v{dst}, s54, v4")
    a("v_sub_u32 v4, 8, v3")
    a("v_and_b32 v4, 7, v4")
    a("v_lshlrev_b32 v4, 19, v4")
    a(f"v_add_u32 v26, v{vMir}, v4")
    a("v_sub_u32 v4, 4, v3")
    a("v_lshlrev_b32 v4, 19, v4")
    a(f"v_add_u32 v27, v{vMir}, v4")
    a(f"v_mov_b32 v{vMir}, v26")
    vMir2 = 27
    for i in range(16): a(f"v_mov_b32 v{C0+i}, 0")
    for i in range(4): a(f"v_mov_b32 v{SA+i}, 0")
    a("s_mov_b32 s75, 0x3f803f80")
    a("s_lshl_b32 s54, s50, 9")
    a(f"s_add_u32 s54, s54, {P1_STATS}")
    a("v_and_b32 v4, 31, v0")
    a("s_lshl_b32 s55, s51, 3")
    a("s_add_u32 s55, s55, s54")
    a(f"v_lshlrev_b32 v{vSW}, 4, v4")
    a(f"v_add_u32 v{vSW}, s55, v{vSW}")
    a(f"v_lshlrev_b32 v{vSR}, 6, v3")
    a(f"v_add_u32 v{vSR}, s54, v{vSR}")
    def rstd_from_lds():
        for sub in range(2):
            for i in range(4):
                a(f"ds_read_b128 {vr(T+32+16*sub+4*i,4)}, v{vSR} offset:{sub*256+i*16}")
        a("s_waitcnt lgkmcnt(0)")
        a(f"s_mov_b32 s78, {hex(0x3b000000)}")
        a(f"s_mov_b32 s79, {hex(0x3b000000)}")
        for k in range(8):
            b = T + 32 + 4*k
            a(f"v_pk_add_f32 {vr(b,2)}, {vr(b,2)}, {vr(b+2,2)}")
        for k in range(8):
            b = T + 32 + 4*k
            a(f"v_pk_mul_f32 {vr(b,2)}, {vr(b,2)}, s[78:79]")
        for k in range(8):
            b = T + 32 + 4*k
            a(f"v_fma_f32 v{b+1}, -v{b}, v{b}, v{b+1}")
        for k in range(8):
            b = T + 32 + 4*k
            a(f"v_add_f32 v{b+1}, 0x3727c5ac, v{b+1}")
        for k in range(8):
            b = T + 32 + 4*k
            a(f"v_rsq_f32 v{RS+k}, v{b+1}")
    if rm:
        G = 28
        a("s_lshl_b32 s54, s11, 3")
        a("s_lshl_b32 s55, s14, 1")
        a("s_add_u32 s54, s54, s55")
        a("s_lshr_b32 s55, s13, 2")
        a("s_add_u32 s54, s54, s55")
        a("s_and_b32 s55, s54, 7")
        a("s_lshl_b32 s55, s55, 5")
        a("s_add_u32 s55, s55, s11")
        a(f"v_and_b32 v{G+4}, 31, v0")
        token_of_c(a, f"v{G}", f"v{G+4}", f"v{G+5}")
        a(f"v_add_u32 v{G}, s55, v{G}")
        a(f"v_lshrrev_b32 v{G+1}, 5, v0")
        a(f"v_lshlrev_b32 v{G+1}, 5, v{G+1}")
        srd(a, 24, 4, GT, 0x200000)
        a("s_and_b32 s57, s13, 3")
        a("s_lshl_b32 s57, s57, 3")
        a("s_lshl_b32 s58, s10, 1")
        a("s_add_u32 s57, s57, s58")
        a("s_lshl_b32 s58, s54, 15")
        a(f"v_add_u32 v{G+2}, s58, {vL16}")
        a(f"s_mov_b32 s80, {hex(0x3a000000)}")
        for x in range(2):
            a(f"s_add_u32 s59, s57, {x}")
            a("s_and_b32 s78, s59, 3")
            a("s_lshl_b32 s78, s78, 6")
            a("s_lshr_b32 s79, s59, 2")
            a("s_add_u32 s78, s78, s79")
            a(f"v_add_u32 v{G+3}, s78, v{G+1}")
            for q in range(4):
                a(f"v_add_u32 v{G+4}, {8*q}, v{G+3}")
                a(f"v_mul_u32_u24 v{G+4}, v{G+4}, v{G}")
                a(f"v_and_b32 v{G+4}, 0x7ff, v{G+4}")
                a(f"v_cvt_f32_u32 v{G+4}, v{G+4}")
                a(f"v_mul_f32 v{G+4}, s80, v{G+4}")
                a(f"v_cos_f32 v{G+6+2*q}, v{G+4}")
                a(f"v_sin_f32 v{G+6+2*q+1}, v{G+4}")
            a.nop(1)
            for q in range(4):
                a(f"v_cvt_pk_bf16_f32 v{G+16+4*x+q}, v{G+6+2*q}, v{G+6+2*q+1}")
            a("s_lshl_b32 s59, s59, 10")
            vm.issue(f"buffer_store_dwordx4 {vr(G+16+4*x,4)}, v{G+2}, s[24:27], s59 offen{SC}")
    else:
        a("s_lshl_b32 s54, s11, 2")
        a("s_add_u32 s54, s54, s14")
        a("s_lshl_b32 s54, s54, 8")
        a(f"s_add_u32 s54, s54, {hex(cnt_off(c4wait))}")
        a("v_mov_b32 v4, s54")
        a("v_mov_b32 v5, 8")
        stamp(a, "P1 poll")
        poll(a, "v4", "v5", 1)
        stamp(a, "P1 go")
        vm.n = 0
        a("s_lshl_b32 s54, s11, 3")
        a("s_lshl_b32 s55, s14, 1")
        a("s_add_u32 s54, s54, s55")
        a("s_add_u32 s54, s54, s50")
        a("s_lshl_b32 s54, s54, 12")
        a("s_lshl_b32 s55, s51, 11")
        a("s_add_u32 s54, s54, s55")
        a("v_and_b32 v4, 31, v0")
        a("v_lshrrev_b32 v5, 5, v0")
        a("v_lshlrev_b32 v5, 10, v5")
        a("v_lshl_add_u32 v5, v4, 3, v5")
        a("v_add_u32 v5, s54, v5")
        srd(a, 24, 4, stoff, 0x40000)
        st_ids = [vm.issue(f"buffer_load_dwordx2 {vr(T+16+2*k,2)}, v5, s[24:27], 0 offen offset:{k*256}{SC}") for k in range(4)]
        dmaA()
        vm.wait(st_ids[-1])
        b = T + 16
        a(f"v_pk_add_f32 {vr(b,2)}, {vr(b,2)}, {vr(b+2,2)}")
        a(f"v_pk_add_f32 {vr(b+4,2)}, {vr(b+4,2)}, {vr(b+6,2)}")
        a(f"v_pk_add_f32 {vr(b,2)}, {vr(b,2)}, {vr(b+4,2)}")
        a(f"v_mov_b32 v{b+2}, v{b}")
        a(f"v_mov_b32 v{b+3}, v{b+1}")
        a.nop(2)
        a(f"v_permlane32_swap_b32 v{b}, v{b+2}")
        a(f"v_permlane32_swap_b32 v{b+1}, v{b+3}")
        a.nop(1)
        a(f"v_pk_add_f32 {vr(b,2)}, {vr(b,2)}, {vr(b+2,2)}")
        a("s_mov_b64 exec, 0xffffffff")
        a(f"ds_write_b64 v{vSW}, {vr(b,2)}")
        a("s_mov_b64 exec, -1")
        a("s_waitcnt lgkmcnt(0)")
    srd(a, 28, 4, voff, 0x400000)
    def reads(s, R):
        hi = 1 if s >= 4 else 0
        off = (s - 4*hi) * 16384
        for kk in range(2):
            for sub in range(2):
                a(f"ds_read_b128 {vr(R+8*kk+4*sub,4)}, v{vAa[(hi,sub,kk)]} offset:{off}")
            for cs in range(2):
                a(f"ds_read_b128 {vr(R+16+8*kk+4*cs,4)}, v{vBa[(hi,kk)]} offset:{off+cs*2048}")
    def mfmas(M):
        for kk in range(2):
            for cs in range(2):
                for sub in range(2):
                    acc = (C0, C1r)[sub] if cs == 0 else (S0, S1)[sub]
                    a(f"v_mfma_f32_16x16x32_bf16 {vr(acc,4)}, {vr(M+8*kk+4*sub,4)}, {vr(M+16+8*kk+4*cs,4)}, {vr(acc,4)}")
        if rm:
            for sub in range(2):
                for i in range(4):
                    a(f"v_dot2_f32_bf16 v{SA+2*sub}, v{M+4*sub+i}, s75, v{SA+2*sub}")
                    a(f"v_dot2_f32_bf16 v{SA+2*sub+1}, v{M+4*sub+i}, v{M+4*sub+i}, v{SA+2*sub+1}")
    sets = [X, Y]
    for s in range(NST):
        vm.wait(ids[s])
        a("s_barrier")
        if s == 0: stamp(a, "P1 first data")
        reads(s, sets[s & 1])
        if s >= 1: mfmas(sets[(s - 1) & 1])
        if s == 0 and not rm: rstd_from_lds()
        a("s_waitcnt lgkmcnt(0)")
    mfmas(sets[(NST - 1) & 1])
    stamp(a, "P1 main done")
    if rm:
        a.nop(3)
        for k in range(4): a(f"v_mov_b32 v{T+k}, v{SA+k}")
        a.nop(2)
        for k in range(4): a(f"v_permlane16_swap_b32 v{SA+k}, v{T+k}")
        a.nop(1)
        for k in range(4): a(f"v_add_f32 v{SA+k}, v{SA+k}, v{T+k}")
        for k in range(4): a(f"v_mov_b32 v{T+k}, v{SA+k}")
        a.nop(2)
        for k in range(4): a(f"v_permlane32_swap_b32 v{SA+k}, v{T+k}")
        a.nop(1)
        for k in range(4): a(f"v_add_f32 v{SA+k}, v{SA+k}, v{T+k}")
        a("v_cmp_gt_u32 vcc, 16, v0")
        a.nop(2)
        a(f"v_cndmask_b32 v{T}, v{SA+2}, v{SA}, vcc")
        a(f"v_cndmask_b32 v{T+1}, v{SA+3}, v{SA+1}, vcc")
        a("s_mov_b64 exec, 0xffffffff")
        a(f"ds_write_b64 v{vSW}, {vr(T,2)}")
        a("s_mov_b64 exec, -1")
        a("s_waitcnt lgkmcnt(0)")
        a("s_barrier")
        rstd_from_lds()
    else:
        a.nop(8)
    a.nop(1)
    for acc, rs in ((C0, RS), (C1r, RS+4), (S0, RS), (S1, RS+4)):
        a(f"v_pk_mul_f32 {vr(acc,2)}, {vr(acc,2)}, {vr(rs,2)}")
        a(f"v_pk_mul_f32 {vr(acc+2,2)}, {vr(acc+2,2)}, {vr(rs+2,2)}")
    AR, AI, DR, DI = 28, 32, 36, 40
    NEG = "neg_lo:[0,1] neg_hi:[0,1]"
    for h in (0, 2):
        a(f"v_pk_add_f32 {vr(AR+h,2)}, {vr(C0+h,2)}, {vr(C1r+h,2)}")
        a(f"v_pk_add_f32 {vr(DR+h,2)}, {vr(C0+h,2)}, {vr(C1r+h,2)} {NEG}")
        a(f"v_pk_add_f32 {vr(AI+h,2)}, {vr(S0+h,2)}, {vr(S1+h,2)}")
        a(f"v_pk_add_f32 {vr(DI+h,2)}, {vr(S0+h,2)}, {vr(S1+h,2)} {NEG}")
    ER, EI, FR, FI = 44, 46, 48, 50
    a(f"v_pk_add_f32 {vr(ER,2)}, {vr(AR,2)}, {vr(AR+2,2)}")
    a(f"v_pk_add_f32 {vr(EI,2)}, {vr(AI,2)}, {vr(AI+2,2)}")
    a(f"v_pk_add_f32 {vr(FR,2)}, {vr(AR,2)}, {vr(AR+2,2)} {NEG}")
    a(f"v_pk_add_f32 {vr(FI,2)}, {vr(AI,2)}, {vr(AI+2,2)} {NEG}")
    UR, UI = 60, 68
    a(f"v_add_f32 v{UR+0}, v{ER}, v{ER+1}");  a(f"v_add_f32 v{UI+0}, v{EI}, v{EI+1}")
    a(f"v_sub_f32 v{UR+4}, v{ER}, v{ER+1}");  a(f"v_sub_f32 v{UI+4}, v{EI}, v{EI+1}")
    a(f"v_add_f32 v{UR+2}, v{FR}, v{FI+1}");  a(f"v_sub_f32 v{UI+2}, v{FI}, v{FR+1}")
    a(f"v_sub_f32 v{UR+6}, v{FR}, v{FI+1}");  a(f"v_add_f32 v{UI+6}, v{FI}, v{FR+1}")
    g0r, g0i, h0r, h0i = 52, 53, 54, 55
    p, q, p2, q2 = 56, 57, 58, 59
    t1, t2, t3, t4 = 76, 77, 78, 79
    a(f"v_add_f32 v{g0r}, v{DR}, v{DI+2}");   a(f"v_sub_f32 v{g0i}, v{DI}, v{DR+2}")
    a(f"v_sub_f32 v{h0r}, v{DR}, v{DI+2}");   a(f"v_add_f32 v{h0i}, v{DI}, v{DR+2}")
    a(f"v_sub_f32 v{p}, v{DR+1}, v{DR+3}");   a(f"v_add_f32 v{q}, v{DI+1}, v{DI+3}")
    a(f"v_add_f32 v{p2}, v{DR+1}, v{DR+3}");  a(f"v_sub_f32 v{q2}, v{DI+1}, v{DI+3}")
    a(f"v_add_f32 v{t1}, v{p}, v{q}");        a(f"v_sub_f32 v{t2}, v{q2}, v{p2}")
    a(f"v_add_f32 v{t3}, v{p2}, v{q2}");      a(f"v_sub_f32 v{t4}, v{q}, v{p}")
    a(f"s_mov_b32 s75, {hex(0x3f3504f3)}")
    a(f"v_fma_f32 v{UR+1}, s75, v{t1}, v{g0r}");   a(f"v_fma_f32 v{UR+5}, -s75, v{t1}, v{g0r}")
    a(f"v_fma_f32 v{UI+1}, s75, v{t2}, v{g0i}");   a(f"v_fma_f32 v{UI+5}, -s75, v{t2}, v{g0i}")
    a(f"v_fma_f32 v{UR+3}, s75, v{t4}, v{h0r}");   a(f"v_fma_f32 v{UR+7}, -s75, v{t4}, v{h0r}")
    a(f"v_fma_f32 v{UI+3}, -s75, v{t3}, v{h0i}");  a(f"v_fma_f32 v{UI+7}, s75, v{t3}, v{h0i}")
    DD, MM = 80, 88
    for r in range(8): a(f"v_cvt_pk_bf16_f32 v{DD+r}, v{UR+r}, v{UI+r}")
    a("v_mov_b32 v76, 0x80000000")
    a("v_mov_b32 v77, 0")
    for r in range(8): a(f"v_xor_b32 v{MM+r}, v76, v{DD+r}")
    for r in range(8): a(f"v_cndmask_b32 v{MM+r}, v{MM+r}, v77, s[76:77]")
    def transp(R):
        a(f"v_permlane32_swap_b32 v{R}, v{R+2}")
        a(f"v_permlane32_swap_b32 v{R+1}, v{R+3}")
        a.nop(2)
        a(f"v_permlane16_swap_b32 v{R}, v{R+1}")
        a(f"v_permlane16_swap_b32 v{R+2}, v{R+3}")
    transp(DD); transp(DD+4); transp(MM); transp(MM+4)
    a("s_mov_b32 s54, 0x200000")
    a(f"buffer_store_dwordx4 {vr(DD,4)}, v{vDir}, s[28:31], 0 offen{SC}")
    a(f"buffer_store_dwordx4 {vr(DD+4,4)}, v{vDir}, s[28:31], s54 offen{SC}")
    a(f"buffer_store_dwordx4 {vr(MM,4)}, v{vMir}, s[28:31], 0 offen{SC}")
    a(f"buffer_store_dwordx4 {vr(MM+4,4)}, v{vMir2}, s[28:31], 0 offen{SC}")
    stamp(a, "P1 stores issued")
    a("s_lshr_b32 s54, s13, 1")
    a("v_mov_b32 v4, s54")
    a("s_sub_u32 s55, 7, s54")
    a("v_writelane_b32 v4, s55, 1")
    a("s_sub_u32 s55, 8, s54")
    a("s_cmp_eq_u32 s13, 0")
    a("s_cselect_b32 s55, 4, s55")
    a("v_writelane_b32 v4, s55, 2")
    a("v_lshlrev_b32 v4, 3, v4")
    a("v_add_u32 v4, s11, v4")
    a("v_lshlrev_b32 v4, 8, v4")
    a(f"v_add_u32 v4, {hex(cnt_off(c1idx))}, v4")
    if rm:
        a("s_lshl_b32 s55, s11, 2")
        a("s_add_u32 s55, s55, s14")
        a("s_lshl_b32 s55, s55, 8")
        a(f"s_add_u32 s55, s55, {hex(cnt_off(CG))}")
        a("v_writelane_b32 v4, s55, 3")
    a("s_bitcmp0_b32 s13, 0")
    if rm: a("s_cselect_b32 s56, 15, 11")
    else: a("s_cselect_b32 s56, 7, 3")
    a("s_mov_b32 s57, 0")
    return "s[56:57]"

def t1_roles(a):
    a("s_and_b32 s13, s12, 7")
    a("s_lshr_b32 s14, s12, 3")
    a("s_and_b32 s50, s10, 1")
    a("s_lshr_b32 s51, s10, 1")

def p2_prefetch_G(a, vm):
    t1_roles(a)
    a("s_lshl_b32 s54, s11, 3")
    a("s_lshl_b32 s55, s14, 1")
    a("s_add_u32 s54, s54, s55")
    a("s_add_u32 s54, s54, s50")
    a("s_lshl_b32 s54, s54, 15")
    a(f"s_add_u32 s54, s54, {hex(GT)}")
    srd(a, 16, 4, "s54", 32768)
    a("s_lshl_b32 s33, s50, 12")
    a("s_lshl_b32 s55, s51, 11")
    a("s_add_u32 s33, s33, s55")
    for s in range(8):
        a(f"s_add_u32 m0, s33, {s*16384 + 8192}")
        a(f"s_add_u32 s32, s55, {s*4096}")
        for i in range(2):
            vm.issue(f"buffer_load_dwordx4 {vL16}, s[16:19], s32 offen offset:{i*1024}{SC} lds")

def gen_P2(a):
    vm = VM(a)
    vA, vB = 8, 9
    vR0, vR1, vO0, vO1, vS = "v12", "v13", "v14", "v15", "v16"
    X, Y, ACC, RES = 28, 60, 92, 108
    t1_roles(a)
    a("s_lshl_b32 s36, s13, 1")
    a("s_add_u32 s52, s36, s50")
    a("s_lshl_b32 s37, s11, 3")
    a("s_lshl_b32 s38, s14, 1")
    a("s_add_u32 s37, s37, s38")
    a("s_add_u32 s53, s37, s51")
    resid_addr(a, "s53", "s52", "s11", "v17", "v18", vS, "v19", "v20", None)
    a("s_cmp_eq_u32 s41, 0")
    a("s_cselect_b64 vcc, -1, 0")
    a("s_cselect_b32 s56, 1024, 32")
    a(f"v_cndmask_b32 {vR0}, v18, v17, vcc")
    a(f"v_add_u32 {vR1}, s56, {vR0}")
    a(f"v_mov_b32 {vO0}, v17")
    a(f"v_add_u32 {vO1}, 1024, v17")
    a("s_add_u32 s20, s4, s42"); a("s_addc_u32 s21, s5, 0")
    a("s_cmp_eq_u32 s41, 0")
    a("s_cselect_b32 s20, s20, s6"); a("s_cselect_b32 s21, s21, s7")
    a(f"s_mov_b32 s22, {hex(XSZ)}"); a(f"s_mov_b32 s23, {hex(SRD3)}")
    a(f"buffer_load_dwordx4 {vr(RES,4)}, {vR0}, s[20:23], 0 offen{SC}")
    a(f"buffer_load_dwordx4 {vr(RES+4,4)}, {vR1}, s[20:23], 0 offen{SC}")
    a("s_lshl_b32 s54, s50, 12")
    a(f"v_add_u32 v{vA}, s54, {vL16}")
    a("s_lshl_b32 s54, s51, 12")
    a("s_add_u32 s54, s54, 8192")
    a(f"v_add_u32 v{vB}, s54, {vL16}")
    a(f"v_add_u32 v{vA+2}, 0x10000, v{vA}")
    a(f"v_add_u32 v{vB+2}, 0x10000, v{vB}")
    a("s_lshl_b32 s54, s11, 4")
    a("s_add_u32 s54, s54, s52")
    a("s_lshl_b32 s54, s54, 15")
    a("s_add_u32 s54, s54, s40")
    srd(a, 16, 4, "s54", 32768)
    srd(a, 24, 4, "s43", XSZ)
    srd(a, 28, 4, "s44", 0x40000)
    a("s_lshl_b32 s33, s50, 12")
    a("s_lshl_b32 s55, s51, 11")
    a("s_add_u32 s33, s33, s55")
    for i in range(16): a(f"v_mov_b32 v{ACC+i}, 0")
    a("s_lshl_b32 s54, s13, 11")
    a("s_add_u32 s54, s54, s45")
    a("v_lshlrev_b32 v4, 8, v0")
    a("v_add_u32 v4, s54, v4")
    a("s_cmp_lt_u32 s13, 4")
    a("s_cselect_b32 s54, 8, 12")
    a("v_mov_b32 v5, s54")
    stamp(a, "P2 poll")
    poll(a, "v4", "v5", 8)
    stamp(a, "P2 go")
    ids = {}
    for s in range(8):
        a(f"s_add_u32 m0, s33, {s*16384}")
        a(f"s_add_u32 s32, s55, {s*4096}")
        for i in range(2):
            ids[s] = vm.issue(f"buffer_load_dwordx4 {vL16}, s[16:19], s32 offen offset:{i*1024}{SC} lds")
    def reads(s, R):
        hi = 2 if s >= 4 else 0
        off = (s % 4) * 16384
        for k in range(4):
            a(f"ds_read_b128 {vr(R+4*k,4)}, v{vA+hi} offset:{off+k*1024}")
            a(f"ds_read_b128 {vr(R+16+4*k,4)}, v{vB+hi} offset:{off+k*1024}")
    def mfmas(M):
        for k in range(4):
            a(f"v_mfma_f32_32x32x16_bf16 {vr(ACC,16)}, {vr(M+4*k,4)}, {vr(M+16+4*k,4)}, {vr(ACC,16)}")
    sets = [X, Y]
    for s in range(8):
        vm.wait(ids[s])
        a("s_barrier")
        if s == 0: stamp(a, "P2 first data")
        reads(s, sets[s & 1])
        if s >= 1: mfmas(sets[(s - 1) & 1])
        a("s_waitcnt lgkmcnt(0)")
    mfmas(sets[1])
    stamp(a, "P2 main done")
    resid_epilogue(a, ACC, RES, X, Y, vO0, vO1, vS, "s[24:27]", "s[28:31]", None)
    stamp(a, "P2 stores issued")
    a("s_lshl_b32 s54, s11, 1")
    a("s_lshr_b32 s55, s14, 1")
    a("s_add_u32 s54, s54, s55")
    a("s_lshl_b32 s54, s54, 8")
    a("s_add_u32 s54, s54, s46")
    a("v_mov_b32 v4, s54")

def p3_roles(a):
    a("s_and_b32 s13, s11, 3")
    a("s_lshl_b32 s13, s13, 2")
    a("s_and_b32 s14, s12, 3")
    a("s_add_u32 s13, s13, s14")
    a("s_lshr_b32 s14, s11, 2")
    a("s_lshl_b32 s14, s14, 3")
    a("s_lshr_b32 s15, s12, 2")
    a("s_add_u32 s14, s14, s15")
    a("s_mul_i32 s15, s13, 7")

def p3_dma(a, vm, t, ids, slot=None):
    if slot is None: slot = t % 5
    for half in range(2):
        a(f"s_add_u32 m0, s34, {slot*32768 + half*4096}")
        a(f"s_add_u32 s35, s34, {t*32768 + half*4096}")
        for i in range(4):
            ids[t] = vm.issue(f"buffer_load_dwordx4 {vL16}, s[16:19], s35 offen offset:{i*1024}{SC} lds")

def p3_prefetch_W(a, vm, ids):
    p3_roles(a)
    a("s_lshl_b32 s41, s15, 15")
    a(f"s_add_u32 s41, s41, {hex(WF)}")
    srd(a, 16, 4, "s41", 7*32768)
    a("s_lshl_b32 s34, s10, 13")
    for t in range(3): p3_dma(a, vm, t, ids)

def gen_P3(a, vm, dma_ids):
    NSLOT = 5
    vWb = [vL16, "v3", "v13"]
    NWR = 8
    WR = 16
    CSR = 48
    MB = 76
    ACC = 80
    T = 192
    vQ, vC1 = 4, 5
    a("v_and_b32 v6, 31, v0")
    a("v_lshrrev_b32 v7, 5, v0")
    a("v_lshlrev_b32 v8, 6, v6")
    a("v_lshl_add_u32 v8, v7, 5, v8")
    a("s_lshl_b32 s33, s15, 11")
    a(f"s_add_u32 s33, s33, {hex(CSP)}")
    srd(a, 24, 4, "s33", 7*2048)
    CT = ACC
    csp = []
    a("s_movk_i32 s38, 4096")
    for t in range(7):
        so = ("0", "s38", "s39")[(t*2048) // 4096] if False else None
        a(f"s_mov_b32 s39, {t*2048}")
        csp.append(vm.issue(f"buffer_load_dwordx4 {vr(CT+8*t,4)}, v8, s[24:27], s39 offen{SC}"))
        csp.append(vm.issue(f"buffer_load_dwordx4 {vr(CT+8*t+4,4)}, v8, s[24:27], s39 offen offset:16{SC}"))
    a("s_lshl_b32 s14, s14, 2")
    a("s_add_u32 s14, s14, s10")
    a("s_lshl_b32 s33, s14, 15")
    a("s_add_u32 s33, s33, s40")
    srd(a, 20, 4, "s33", 32768)
    a("s_lshl_b32 s33, s14, 12")
    a("s_add_u32 s33, s33, s42")
    srd(a, 28, 4, "s33", 4096)
    a("s_mul_i32 s33, s14, 112")
    a("s_add_u32 s33, s33, s15")
    a("s_lshl_b32 s33, s33, 10")
    a("s_add_u32 s33, s33, s43")
    srd(a, 44+4, 4, "s33", 7*1024)
    a("v_lshlrev_b32 v7, 11, v7")
    a("v_lshl_add_u32 v6, v6, 3, v7")
    a(f"v_add_u32 v3, 0x10000, {vL16}")
    a(f"v_add_u32 v13, 0x20000, {vL16}")
    vm.wait(csp[-1])
    for t in range(7):
        b = CT + 8*t
        a(f"v_pk_add_f32 {vr(b,2)}, {vr(b,2)}, {vr(b+2,2)}")
        a(f"v_pk_add_f32 {vr(b+4,2)}, {vr(b+4,2)}, {vr(b+6,2)}")
        a(f"v_pk_add_f32 {vr(b,2)}, {vr(b,2)}, {vr(b+4,2)}")
        a(f"v_add_f32 v{b}, v{b}, v{b+1}")
        a(f"v_mov_b32 v{b+1}, v{b}")
    a.nop(1)
    for t in range(7):
        b = CT + 8*t
        a(f"v_permlane32_swap_b32 v{b}, v{b+1}")
    a("v_cmp_gt_u32 vcc, 32, v0")
    for t in range(7):
        b = CT + 8*t; c = CSR + 4*t
        a(f"v_add_f32 v{b}, v{b}, v{b+1}")
        a(f"v_cvt_pk_bf16_f32 v{b+2}, v{b}, v{b}")
        a(f"v_and_b32 v{b+3}, 0xffff0000, v{b+2}")
        a(f"v_sub_f32 v{b+3}, v{b}, v{b+3}")
        a(f"v_cvt_pk_bf16_f32 v{b+3}, v{b+3}, v{b+3}")
        a(f"v_and_b32 v{b+2}, 0xffff, v{b+2}")
        a(f"v_lshl_or_b32 v{b+3}, v{b+3}, 16, v{b+2}")
        a(f"v_cndmask_b32 v{c}, 0, v{b+3}, vcc")
        a(f"v_cndmask_b32 v{c+1}, 0, v{b+2}, vcc")
        a(f"v_mov_b32 v{c+2}, 0")
        a(f"v_mov_b32 v{c+3}, 0")
    a("s_lshr_b32 s54, s14, 2")
    a("s_lshl_b32 s54, s54, 8")
    a("s_add_u32 s54, s54, s44")
    a("v_mov_b32 v10, s54")
    a("v_mov_b32 v11, 16")
    stamp(a, "P3 poll")
    poll(a, "v10", "v11", 1)
    stamp(a, "P3 go")
    vm.n = 0
    for t in range(3): dma_ids[t] = 0
    x_ids = []
    for ks in range(32):
        if ks % 4 == 0: a(f"s_mov_b32 s36, {(ks//4)*4096}")
        x_ids.append(vm.issue(f"buffer_load_dwordx4 {ar(4*ks,4)}, {vL16}, s[20:23], s36 offen offset:{(ks%4)*1024}{SC}"))
        if ks == 7:
            st_ids = [vm.issue(f"buffer_load_dwordx2 {vr(T+2*k,2)}, v6, s[28:31], 0 offen offset:{k*256}{SC}") for k in range(8)]
    p3_dma(a, vm, 3, dma_ids)
    p3_dma(a, vm, 4, dma_ids)
    stamp(a, "P3 loads issued")
    def stats_code():
        L = []
        for k in (4, 2, 1):
            for i in range(k):
                L.append(f"v_add_f32 v{T+2*i}, v{T+2*i}, v{T+2*(i+k)}")
                L.append(f"v_add_f32 v{T+2*i+1}, v{T+2*i+1}, v{T+2*(i+k)+1}")
        L += [f"v_mov_b32 v{T+2}, v{T}", f"v_mov_b32 v{T+3}, v{T+1}", "s_nop 1",
              f"v_permlane32_swap_b32 v{T}, v{T+2}", f"v_permlane32_swap_b32 v{T+1}, v{T+3}", "s_nop 0",
              f"v_add_f32 v{T}, v{T}, v{T+2}", f"v_add_f32 v{T+1}, v{T+1}, v{T+3}",
              f"v_mul_f32 v{T}, 0x3b000000, v{T}", f"v_mul_f32 v{T+1}, 0x3b000000, v{T+1}",
              f"v_fma_f32 v{T+1}, -v{T}, v{T}, v{T+1}",
              f"v_add_f32 v{vQ}, 0x3727c5ac, v{T+1}",
              f"v_rsq_f32 v{vC1}, v{vQ}",
              f"v_sub_f32 v{T+2}, 0, v{T}",
              f"v_mul_f32 v{vC1}, 0xbfb8aa3b, v{vC1}",
              f"v_cvt_pk_bf16_f32 v{T+3}, v{T+2}, v{T+2}",
              f"v_and_b32 v{T+4}, 0xffff0000, v{T+3}",
              f"v_sub_f32 v{T+4}, v{T+2}, v{T+4}",
              f"v_cvt_pk_bf16_f32 v{T+4}, v{T+4}, v{T+4}",
              f"v_and_b32 v{T+4}, 0xffff, v{T+4}",
              "v_cmp_gt_u32 vcc, 32, v0",
              f"v_mov_b32 v{MB+2}, 0", f"v_mov_b32 v{MB+3}, 0",
              f"v_cndmask_b32 v{MB}, 0, v{T+3}, vcc", f"v_cndmask_b32 v{MB+1}, 0, v{T+4}, vcc"]
        return [(4, x) for x in L]
    order = []
    for ks in range(32): order += [(0, ks), (1, ks), (2, ks)]
    for t in range(3, 7): order += [(t, ks) for ks in range(32)]
    N = len(order)
    last_use = {}
    for k, (t, ks) in enumerate(order): last_use[t] = k
    def wread(k):
        t, ks = order[k]
        off = (t % NSLOT)*32768 + ks*1024
        a(f"ds_read_b128 {vr(WR+4*(k%NWR),4)}, {vWb[off >> 16]} offset:{off & 0xffff}")
    def epi(t):
        A = ACC + 16*t
        E = T
        L = []
        for i in range(8): L.append((4, f"v_mul_f32 v{E+i}, v{vC1}, v{A+i}"))
        for i in range(8): L.append((8, f"v_exp_f32 v{E+i}, v{E+i}"))
        for i in range(8): L.append((4, f"v_mul_f32 v{E+8+i}, v{A+i}, v{A+8+i}"))
        for i in range(8): L.append((4, f"v_fma_f32 v{E+i}, v{E+i}, v{vQ}, v{vQ}"))
        for i in range(8): L.append((8, f"v_rcp_f32 v{E+i}, v{E+i}"))
        for i in range(8): L.append((4, f"v_mul_f32 v{E+8+i}, v{E+8+i}, v{E+i}"))
        for p in range(4): L.append((4, f"v_cvt_pk_bf16_f32 v{E+16+p}, v{E+8+2*p}, v{E+8+2*p+1}"))
        L.append((8, "s_nop 1"))
        L.append((4, f"v_permlane32_swap_b32 v{E+16}, v{E+18}"))
        L.append((4, f"v_permlane32_swap_b32 v{E+17}, v{E+19}"))
        L.append((4, ("ST", f"buffer_store_dwordx4 {vr(E+16,4)}, {vL16}, s[48:51], {'0' if t < 4 else 's38'} offen offset:{(t%4)*1024}{SC}")))
        return L
    pending = []
    def emit(budget, k):
        while pending and budget > 0 and pending[0][0] <= k:
            _, cost, x = pending.pop(0)
            if isinstance(x, tuple):
                if x[0] == "ST": vm.issue(x[1])
                elif x[0] == "DMA":
                    t, half, i = x[1:]
                    if i == 0:
                        a(f"s_add_u32 m0, s34, {(t % NSLOT)*32768 + half*4096}")
                        a(f"s_add_u32 s35, s34, {t*32768 + half*4096}")
                    dma_ids[t] = vm.issue(f"buffer_load_dwordx4 {vL16}, s[16:19], s35 offen offset:{i*1024}{SC} lds")
                elif x[0] == "VMW": vm.wait(x[1]())
            else: a(x)
            budget -= cost
    PF = NWR - 1
    ready = {0, 1, 2}
    a(f"s_waitcnt vmcnt({vm.n})")
    a("s_barrier")
    for k in range(PF): wread(k)
    nread = PF
    dmaq = []
    for k, (t, ks) in enumerate(order):
        if k == 97:
            a("s_barrier")
            for n_, (tt, half, i) in enumerate([(tt, half, i) for tt in (5, 6) for half in range(2) for i in range(4)]):
                dmaq.append((k + 1 + 2*n_, ("DMA", tt, half, i)))
        if k == 24:
            pending.append((k, 4, ("VMW", lambda: st_ids[-1])))
            for c, x in stats_code(): pending.append((k, c, x))
        if nread < N:
            tn = order[nread][0]
            if tn not in ready:
                vm.wait(dma_ids[tn]); a("s_barrier"); ready.add(tn)
            wread(nread); nread += 1
        if k % 2 == 0 or nread >= N or True:
            a(f"s_waitcnt lgkmcnt({nread - 1 - k})")
        if t == 0: vm.wait(x_ids[ks])
        A = ACC + 16*t
        a(f"v_mfma_f32_32x32x16_bf16 {vr(A,16)}, {vr(WR+4*(k%NWR),4)}, {ar(4*ks,4)}, {'0' if ks == 0 else vr(A,16)}")
        if k == last_use[t]:
            a(f"v_mfma_f32_32x32x16_bf16 {vr(A,16)}, {vr(CSR+4*t,4)}, {vr(MB,4)}, {vr(A,16)}")
            for c, x in epi(t): pending.append((k + 4, c, x))
        budget = 12
        if dmaq and dmaq[0][0] <= k:
            _, (_, tt, half, i) = dmaq.pop(0)
            if i == 0:
                a(f"s_add_u32 m0, s34, {(tt % NSLOT)*32768 + half*4096}")
                a(f"s_add_u32 s35, s34, {tt*32768 + half*4096}")
            dma_ids[tt] = vm.issue(f"buffer_load_dwordx4 {vL16}, s[16:19], s35 offen offset:{i*1024}{SC} lds")
            budget = 4
        emit(budget, k)
    stamp(a, "P3 main done")
    a.nop(12)
    emit(10**9, 10**9)
    stamp(a, "P3 stores issued")
    a("s_lshr_b32 s54, s14, 2")
    a("s_lshl_b32 s54, s54, 8")
    a("s_add_u32 s54, s54, s45")
    a("v_mov_b32 v4, s54")

P4D = 10
def p4_prefetch_WD(a, vm):
    t1_roles(a)
    a("s_lshl_b32 s54, s13, 1")
    a("s_add_u32 s54, s54, s50")
    a("s_mul_i32 s54, s54, 114688")
    a(f"s_add_u32 s54, s54, {hex(WD)}")
    srd(a, 16, 4, "s54", 114688)
    a("s_lshl_b32 s33, s50, 12")
    a("s_lshl_b32 s55, s51, 11")
    a("s_add_u32 s33, s33, s55")
    for s in range(P4D):
        a(f"s_add_u32 m0, s33, {s*16384}")
        a(f"s_add_u32 s32, s55, {s*4096}")
        for i in range(2):
            vm.issue(f"buffer_load_dwordx4 {vL16}, s[16:19], s32 offen offset:{i*1024}{SC} lds")

def gen_P4(a):
    vm = VM(a)
    D = P4D
    RING = D*16384
    vA, vB, vAc, vBc = "v8", "v9", "v10", "v11"
    vR0, vR1, vO0, vO1, vS = "v12", "v13", "v14", "v15", "v16"
    X, Y, ACC, RES = 28, 60, 92, 108
    t1_roles(a)
    a("s_lshl_b32 s36, s13, 1")
    a("s_add_u32 s52, s36, s50")
    a("s_lshl_b32 s37, s11, 3")
    a("s_lshl_b32 s38, s14, 1")
    a("s_add_u32 s37, s37, s38")
    a("s_add_u32 s53, s37, s51")
    resid_addr(a, "s53", "s52", "s11", "v17", "v18", vS, "v19", "v20", None)
    a(f"v_mov_b32 {vR0}, v17")
    a(f"v_add_u32 {vR1}, 1024, v17")
    a("s_cmp_eq_u32 s41, 0")
    a("s_cselect_b64 vcc, -1, 0")
    a("s_cselect_b32 s56, 1024, 32")
    a(f"v_cndmask_b32 {vO0}, v18, v17, vcc")
    a(f"v_add_u32 {vO1}, s56, {vO0}")
    srd(a, 20, 4, "s42", XSZ)
    a(f"buffer_load_dwordx4 {vr(RES,4)}, {vR0}, s[20:23], 0 offen{SC}")
    a(f"buffer_load_dwordx4 {vr(RES+4,4)}, {vR1}, s[20:23], 0 offen{SC}")
    a("s_add_u32 s24, s4, s43"); a("s_addc_u32 s25, s5, 0")
    a("s_cmp_eq_u32 s41, 0")
    a("s_cselect_b32 s24, s24, s8"); a("s_cselect_b32 s25, s25, s9")
    a(f"s_mov_b32 s26, {hex(XSZ)}"); a(f"s_mov_b32 s27, {hex(SRD3)}")
    srd(a, 28, 4, "s44", 0x40000)
    a("s_lshl_b32 s54, s50, 12")
    a(f"v_add_u32 {vA}, s54, {vL16}")
    a("s_lshl_b32 s54, s51, 12")
    a("s_add_u32 s54, s54, 8192")
    a(f"v_add_u32 {vB}, s54, {vL16}")
    a("s_add_u32 s54, s37, s50")
    a("s_mul_i32 s54, s54, 114688")
    a("s_add_u32 s54, s54, s40")
    srd(a, 20, 4, "s54", 114688)
    a("s_lshl_b32 s33, s50, 12")
    a("s_lshl_b32 s55, s51, 11")
    a("s_add_u32 s33, s33, s55")
    for i in range(16): a(f"v_mov_b32 v{ACC+i}, 0")
    a("s_lshl_b32 s54, s11, 1")
    a("s_lshr_b32 s56, s14, 1")
    a("s_add_u32 s54, s54, s56")
    a("s_lshl_b32 s54, s54, 8")
    a("s_add_u32 s54, s54, s45")
    a("v_mov_b32 v4, s54")
    a("v_mov_b32 v5, 16")
    stamp(a, "P4 poll")
    poll(a, "v4", "v5", 1)
    stamp(a, "P4 go")
    idb = {}
    for s in range(D):
        a(f"s_add_u32 m0, s33, {s*16384 + 8192}")
        a(f"s_add_u32 s32, s55, {s*4096}")
        for i in range(2):
            idb[s] = vm.issue(f"buffer_load_dwordx4 {vL16}, s[20:23], s32 offen offset:{i*1024}{SC} lds")
    def reads(R, va, vb):
        for k in range(4):
            a(f"ds_read_b128 {vr(R+4*k,4)}, {va} offset:{k*1024}")
            a(f"ds_read_b128 {vr(R+16+4*k,4)}, {vb} offset:{k*1024}")
    def mfmas(M):
        for k in range(4):
            a(f"v_mfma_f32_32x32x16_bf16 {vr(ACC,16)}, {vr(M+4*k,4)}, {vr(M+16+4*k,4)}, {vr(ACC,16)}")
    sets = [X, Y]
    def dma_static(t):
        slot = t % D
        a(f"s_add_u32 m0, s33, {slot*16384}")
        a(f"s_add_u32 s32, s55, {t*4096}")
        for i in range(2): vm.issue(f"buffer_load_dwordx4 {vL16}, s[16:19], s32 offen offset:{i*1024}{SC} lds")
        a(f"s_add_u32 m0, s33, {slot*16384 + 8192}")
        a("s_nop 0")
        for i in range(2): idb[t] = vm.issue(f"buffer_load_dwordx4 {vL16}, s[20:23], s32 offen offset:{i*1024}{SC} lds")
    for s in range(D):
        vm.wait(idb[s])
        a("s_barrier")
        if s == 0: stamp(a, "P4 first data")
        if s >= 1: dma_static(s + D - 1)
        a(f"v_add_u32 {vAc}, {s*16384}, {vA}")
        a(f"v_add_u32 {vBc}, {s*16384}, {vB}")
        reads(sets[s & 1], vAc, vBc)
        if s >= 1: mfmas(sets[(s - 1) & 1])
        a("s_waitcnt lgkmcnt(0)")
    a("s_mov_b32 s35, 0")
    a(f"s_add_u32 s34, s33, {((2*D - 1) % D)*16384}")
    a(f"s_add_u32 s32, s55, {(2*D - 1)*4096}")
    a(f"s_mov_b32 s36, {(28 - D)//2}")
    L = uid("p4loop")
    a.label(L)
    for par in range(2):
        a(f"s_waitcnt vmcnt({(D-2)*4})")
        a("s_barrier")
        a("s_mov_b32 m0, s34")
        a("s_add_u32 s37, s34, 8192")
        for i in range(2): a(f"buffer_load_dwordx4 {vL16}, s[16:19], s32 offen offset:{i*1024}{SC} lds")
        a("s_mov_b32 m0, s37")
        a("s_add_u32 s34, s34, 16384")
        for i in range(2): a(f"buffer_load_dwordx4 {vL16}, s[20:23], s32 offen offset:{i*1024}{SC} lds")
        a("s_add_u32 s32, s32, 4096")
        a(f"s_cmp_ge_u32 s34, {RING}")
        a(f"s_cselect_b32 s57, {RING}, 0")
        a("s_sub_u32 s34, s34, s57")
        a(f"v_add_u32 {vAc}, s35, {vA}")
        a(f"v_add_u32 {vBc}, s35, {vB}")
        a("s_add_u32 s35, s35, 16384")
        a(f"s_cmp_ge_u32 s35, {RING}")
        a(f"s_cselect_b32 s57, {RING}, 0")
        a("s_sub_u32 s35, s35, s57")
        reads(sets[(D + par) & 1], vAc, vBc)
        mfmas(sets[(D + par - 1) & 1])
        a("s_waitcnt lgkmcnt(0)")
    a("s_sub_u32 s36, s36, 1")
    a("s_cmp_lg_u32 s36, 0")
    a(f"s_cbranch_scc1 {L}")
    mfmas(sets[(28 - 1) & 1])
    a("s_waitcnt vmcnt(0)")
    stamp(a, "P4 main done")
    a.nop(4)
    resid_epilogue(a, ACC, RES, X, Y, vO0, vO1, vS, "s[24:27]", "s[28:31]", "s_cmp_lg_u32 s47, 0")
    stamp(a, "P4 stores issued")
    a("s_lshl_b32 s54, s11, 2")
    a("s_add_u32 s54, s54, s14")
    a("s_lshl_b32 s54, s54, 8")
    a("s_add_u32 s54, s54, s46")
    a("v_mov_b32 v4, s54")

SU_WF = 132096
SU_WD = 146432
def setup_loads(a, vm):
    a("s_and_b32 s54, s2, 15")
    a("s_lshr_b32 s55, s2, 4")
    a("s_mul_i32 s56, s54, 224")
    a("s_mul_i32 s57, s55, 32*3584")
    a("s_add_u32 s56, s56, s57")
    srd(a, 24, 64, 0, 512*3584)
    srd(a, 28, 66, 0, 512*3584)
    a("s_movk_i32 s58, 4682")
    a("s_movk_i32 s59, 3584")
    for n in range(4):
        E = uid("su")
        if n == 3:
            a("s_cmp_ge_u32 s10, 2"); a(f"s_cbranch_scc1 {E}")
        a(f"s_add_u32 s36, s10, {4*n}")
        a("s_cmp_ge_u32 s36, 7")
        a("s_cselect_b32 s37, 7, 0")
        a("s_sub_u32 s37, s36, s37")
        a("s_lshl_b32 s38, s37, 6")
        a("v_add_u32 v4, s38, v0")
        a("v_mul_u32_u24 v5, s58, v4")
        a("v_lshrrev_b32 v5, 16, v5")
        a("v_mul_u32_u24 v6, 14, v5")
        a("v_sub_u32 v6, v4, v6")
        a("v_mul_u32_u24 v5, s59, v5")
        a("v_lshl_add_u32 v5, v6, 4, v5")
        a("s_lshl_b32 s38, s36, 10")
        a(f"s_add_u32 m0, s38, {SU_WF}")
        a("s_cmp_ge_u32 s36, 7")
        U, J = uid("suu"), uid("suj")
        a(f"s_cbranch_scc1 {U}")
        vm.issue("buffer_load_dwordx4 v5, s[24:27], s56 offen lds")
        a(f"s_branch {J}")
        a.label(U)
        a("buffer_load_dwordx4 v5, s[28:31], s56 offen lds")
        a.label(J)
        if n == 3:
            vm.n -= 1
            a.label(E)
    E = uid("su")
    a("s_cmp_ge_u32 s2, 224"); a(f"s_cbranch_scc1 {E}")
    srd(a, 24, 68, 0, 1792*1024)
    a("s_lshr_b32 s54, s2, 1")
    a("s_lshl_b32 s54, s54, 14")
    a("s_and_b32 s55, s2, 1")
    a("s_lshl_b32 s55, s55, 9")
    a("s_add_u32 s54, s54, s55")
    a("s_lshl_b32 s55, s10, 12")
    a("s_add_u32 s54, s54, s55")
    a("v_lshrrev_b32 v4, 5, v0")
    a("v_and_b32 v5, 31, v0")
    a("v_lshlrev_b32 v5, 4, v5")
    a("v_lshl_add_u32 v5, v4, 10, v5")
    a("s_lshl_b32 s55, s10, 11")
    for i in range(2):
        a(f"s_add_u32 m0, s55, {SU_WD + i*1024}")
        a(f"s_add_u32 s36, s54, {i*2048}")
        a("buffer_load_dwordx4 v5, s[24:27], s36 offen lds")
    a.label(E)

def setup_process(a):
    a("v_lshrrev_b32 v4, 4, v0")
    a("v_lshrrev_b32 v5, 1, v4")
    a("v_lshlrev_b32 v5, 3, v5")
    a("v_bfe_u32 v6, v0, 2, 2")
    a("v_add_u32 v5, v5, v6")
    a("v_and_b32 v4, 1, v4")
    a("v_and_b32 v6, 3, v0")
    a("v_mul_u32_u24 v7, 224, v5")
    a("v_mul_u32_u24 v8, 7168, v4") if False else None
    a("s_movk_i32 s54, 7168")
    a("v_mad_u32_u24 v7, v4, s54, v7")
    a("v_lshl_add_u32 v7, v6, 3, v7")
    a("s_lshl_b32 s55, s10, 5")
    a(f"s_add_u32 s55, s55, {SU_WF}")
    a("v_add_u32 v7, s55, v7")
    for i in range(4): a(f"v_mov_b32 v{8+i}, 0x3f803f80")
    srd(a, 24, 4, WF, 0x380000)
    srd(a, 28, 4, CSP, 112*2048)
    a("s_and_b32 s54, s2, 15")
    a("s_mul_i32 s54, s54, 7")
    a("s_lshr_b32 s56, s2, 4")
    a("v_and_b32 v12, 31, v0")
    a("v_lshlrev_b32 v12, 6, v12")
    for x in range(2):
        E = uid("sp")
        if x == 1:
            a("s_cmp_eq_u32 s10, 3"); a(f"s_cbranch_scc1 {E}")
        for ks in range(2):
            R = 16 + 4*ks
            a(f"ds_read_b64_tr_b16 {vr(R,2)}, v7 offset:{ks*16*224 + x*128}")
            a(f"ds_read_b64_tr_b16 {vr(R+2,2)}, v7 offset:{ks*16*224 + 4*224 + x*128}")
        a("s_add_u32 s57, s54, s10")
        if x: a("s_add_u32 s57, s57, 4")
        a("s_lshl_b32 s58, s57, 15")
        a("s_lshl_b32 s59, s56, 11")
        a("s_add_u32 s58, s58, s59")
        a("s_waitcnt lgkmcnt(0)")
        for ks in range(2):
            R = 16 + 4*ks
            a(f"buffer_store_dwordx4 {vr(R,4)}, {vL16}, s[24:27], s58 offen offset:{ks*1024}{SC}")
            a(f"v_mfma_f32_32x32x16_bf16 v[32:47], v[8:11], {vr(R,4)}, {'0' if ks == 0 else 'v[32:47]'}")
        a("s_lshl_b32 s57, s57, 11")
        a("s_lshl_b32 s59, s56, 2")
        a("s_add_u32 s57, s57, s59")
        a.nop(12)
        a("s_mov_b64 exec, 0xffffffff")
        a(f"buffer_store_dword v32, v12, s[28:31], s57 offen{SC}")
        a("s_mov_b64 exec, -1")
        if x == 1: a.label(E)
    E = uid("sp")
    a("s_cmp_ge_u32 s2, 224"); a(f"s_cbranch_scc1 {E}")
    a("v_lshlrev_b32 v7, 9, v5")
    a("v_lshl_add_u32 v7, v4, 5, v7")
    a("v_lshl_add_u32 v7, v6, 3, v7")
    a("s_lshl_b32 s55, s10, 7")
    a(f"s_add_u32 s55, s55, {SU_WD}")
    a("v_add_u32 v7, s55, v7")
    srd(a, 24, 4, WD, 0x1C0000)
    for x in range(2):
        R = 16 + 4*x
        a(f"ds_read_b64_tr_b16 {vr(R,2)}, v7 offset:{x*64}")
        a(f"ds_read_b64_tr_b16 {vr(R+2,2)}, v7 offset:{4*512 + x*64}")
    a("s_and_b32 s54, s2, 1")
    a("s_lshl_b32 s54, s54, 3")
    a("s_lshl_b32 s55, s10, 1")
    a("s_add_u32 s54, s54, s55")
    a("s_mul_i32 s54, s54, 112")
    a("s_lshr_b32 s55, s2, 1")
    a("s_add_u32 s54, s54, s55")
    a("s_lshl_b32 s54, s54, 10")
    a("s_add_u32 s55, s54, 114688")
    a("s_waitcnt lgkmcnt(0)")
    a(f"buffer_store_dwordx4 v[16:19], {vL16}, s[24:27], s54 offen{SC}")
    a(f"buffer_store_dwordx4 v[20:23], {vL16}, s[24:27], s55 offen{SC}")
    a.label(E)

def build():
    a = Asm()
    name = "interleave_layers__spectral_fnet__swiglu_ffn__prompt_kernel"
    hdr = open("interleave_layers__spectral_fnet__swiglu_ffn__prompt.s.ref").read().split("\n")
    hdr = [l for l in hdr if l.startswith(";") and "@launch" not in l and "Override launch" not in l and "grid=ceil" not in l]
    for l in hdr: a.raw(l)
    a.raw("; @launch grid=(256,1,1) block=(256,1,1) lds=163840")
    a.raw('.amdgcn_target "amdgcn-amd-amdhsa--gfx950"')
    a.raw(".text")
    a.raw(f".globl {name}"); a.raw(".p2align 8"); a.raw(f".type {name},@function"); a.raw(f"{name}:")
    a("s_cmp_ge_u32 s2, 256"); a("s_cbranch_scc1 k_exit")
    a(f"s_load_dwordx2 s[4:5], s[0:1], {KA_WS}")
    a(f"s_load_dwordx2 s[6:7], s[0:1], {KA_X0}")
    a(f"s_load_dwordx4 s[60:63], s[0:1], {KA_HRE}")
    a(f"s_load_dwordx4 s[64:67], s[0:1], {KA_WG}")
    a(f"s_load_dwordx4 s[68:71], s[0:1], {KA_WDN}")
    a(f"s_load_dwordx2 s[96:97], s[0:1], {KA_DBG}")
    a("v_lshrrev_b32 v1, 6, v0")
    a("v_and_b32 v0, 63, v0")
    a("v_readfirstlane_b32 s10, v1")
    a(f"v_lshlrev_b32 {vL16}, 4, v0")
    a("s_and_b32 s11, s2, 7")
    a("s_lshr_b32 s12, s2, 3")
    a("s_mov_b32 s73, 0")
    if PROF: a("v_mov_b32 v255, 0")
    a("s_waitcnt lgkmcnt(0)")
    a("s_mov_b32 s8, s70"); a("s_mov_b32 s9, s71")
    if DBGT:
        a("s_memrealtime s[98:99]"); a("s_waitcnt lgkmcnt(0)")
    if PROF:
        a("s_memrealtime s[92:93]"); a("s_waitcnt lgkmcnt(0)"); a("v_writelane_b32 v255, s92, 62")
    stamp(a, "entry")
    Z = uid("z")
    a("s_cmp_lg_u32 s2, 0"); a(f"s_cbranch_scc1 {Z}")
    a("s_cmp_lg_u32 s10, 3"); a(f"s_cbranch_scc1 {Z}")
    a("v_lshlrev_b32 v2, 8, v0")
    a(f"v_add_u32 v2, {hex(CNT)}, v2")
    a("v_mov_b32 v3, 0")
    for i in range(5):
        a("global_store_dword v2, v3, s[4:5] sc1")
        a("v_add_u32 v2, 0x4000, v2")
    a("s_waitcnt vmcnt(0)")
    a("v_mov_b32 v2, 0"); a("v_mov_b32 v3, 1")
    a("s_mov_b64 exec, 1")
    a("global_store_dword v2, v3, s[96:97] sc1")
    a("s_mov_b64 exec, -1")
    a.label(Z)
    su_vm = {}
    def ap(a, vm):
        setup_loads(a, vm)
    mask = gen_P1(a, True, 0, 0, V0, None, C1, after_prologue=ap)
    a("v_mov_b32 v6, 0"); a("v_mov_b32 v7, 1")
    a("s_waitcnt vmcnt(0)")
    poll(a, "v6", "v7", 1, base="s[96:97]")
    signal(a, "v4", mask)
    stamp(a, "P1 signalled")
    vmx = VM(a)
    p2_prefetch_G_deferred = True
    setup_process(a)
    a("s_lshr_b32 s54, s2, 4")
    a("s_lshl_b32 s54, s54, 8")
    a(f"s_add_u32 s54, s54, {hex(cnt_off(CS))}")
    a("v_mov_b32 v4, s54")
    signal(a, "v4")
    stamp(a, "setup signalled")
    a("s_mov_b32 s72, 0")
    a("s_lshl_b32 s54, s11, 2")
    a("s_lshr_b32 s55, s12, 3")
    a("s_add_u32 s54, s54, s55")
    a("s_lshl_b32 s54, s54, 8")
    a(f"s_add_u32 s54, s54, {hex(cnt_off(CG))}")
    a("v_mov_b32 v4, s54"); a("v_mov_b32 v5, 8")
    poll(a, "v4", "v5", 1)
    stamp(a, "CG seen")
    a.label("layer_loop")
    INLOOP[0] = True
    p2_prefetch_G(a, VM(a))
    sel(a, "s40", V0, V1); sel(a, "s41", 1, 0); sel(a, "s42", X2, X2); sel(a, "s43", X1, X3); sel(a, "s44", STA, STC)
    sel(a, "s45", cnt_off(C1), cnt_off(C1+64)); sel(a, "s46", cnt_off(C2), cnt_off(C2+16))
    gen_P2(a)
    signal(a, "v4")
    stamp(a, "P2 signalled")
    Lskip = uid("cs")
    a("s_cmp_lg_u32 s72, 0"); a(f"s_cbranch_scc1 {Lskip}")
    a("v_lshlrev_b32 v4, 8, v0")
    a(f"v_add_u32 v4, {hex(cnt_off(CS))}, v4")
    a("v_mov_b32 v5, 16")
    poll(a, "v4", "v5", 16)
    stamp(a, "CS seen")
    a.label(Lskip)
    vm3 = VM(a); ids3 = {}
    p3_prefetch_W(a, vm3, ids3)
    sel(a, "s40", X1, X3); sel(a, "s42", STA, STC); sel(a, "s43", H0, H1)
    sel(a, "s44", cnt_off(C2), cnt_off(C2+16)); sel(a, "s45", cnt_off(C3), cnt_off(C3+16))
    gen_P3(a, vm3, ids3)
    signal(a, "v4")
    stamp(a, "P3 signalled")
    p4_prefetch_WD(a, VM(a))
    sel(a, "s40", H0, H1); sel(a, "s41", 0, 1); sel(a, "s42", X1, X3); sel(a, "s43", X2, X2); sel(a, "s44", STB, STB)
    sel(a, "s45", cnt_off(C3), cnt_off(C3+16)); sel(a, "s46", cnt_off(C4), cnt_off(C4))
    a("s_mov_b32 s47, s72")
    gen_P4(a)
    a("s_cmp_lg_u32 s72, 0"); a("s_cbranch_scc1 k_done")
    signal(a, "v4")
    stamp(a, "P4 signalled")
    INLOOP[0] = False
    p1_prefetch_F(a, VM(a))
    mask = gen_P1(a, False, X2, STB, V1, C4, C1+64)
    signal(a, "v4", mask)
    stamp(a, "P1b signalled")
    a("s_mov_b32 s72, 1")
    a("s_branch layer_loop")
    a.label("k_done")
    if DBGT:
        a("s_waitcnt vmcnt(0)")
        a("s_memrealtime s[92:93]"); a("s_waitcnt lgkmcnt(0)")
        a("s_sub_u32 s92, s92, s98")
        a("v_mov_b32 v3, s92")
        a("s_lshr_b32 s54, s2, 4")
        a("s_lshl_b32 s54, s54, 2")
        a("v_mov_b32 v2, s54")
        a("s_and_b32 s55, s2, 15")
        a("s_cmp_lg_u32 s55, 0")
        a("s_cbranch_scc1 k_exit")
        a("s_cmp_eq_u32 s2, 0")
        a("s_cbranch_scc1 k_exit")
        a("s_mov_b64 exec, 1")
        a("global_store_dword v2, v3, s[96:97]")
    if PROF:
        a("s_waitcnt vmcnt(0)")
        a("s_memtime s[92:93]"); a("s_waitcnt lgkmcnt(0)"); a("v_writelane_b32 v255, s92, 61")
        a("s_memrealtime s[92:93]"); a("s_waitcnt lgkmcnt(0)"); a("v_writelane_b32 v255, s92, 63")
        a("s_lshl_b32 s54, s2, 2"); a("s_add_u32 s54, s54, s10"); a("s_lshl_b32 s54, s54, 8")
        a(f"s_add_u32 s54, s54, {hex(TS)}")
        a("v_lshlrev_b32 v2, 2, v0"); a("v_add_u32 v2, s54, v2")
        a("global_store_dword v2, v255, s[4:5]")
    a.label("k_exit")
    a("s_endpgm")
    a.raw('.section .rodata,"a"')
    a.raw(f""".p2align 6
.amdhsa_kernel {name}
  .amdhsa_next_free_vgpr 512
  .amdhsa_next_free_sgpr 102
  .amdhsa_accum_offset 256
  .amdhsa_group_segment_fixed_size 0
  .amdhsa_kernarg_size 96
  .amdhsa_user_sgpr_count 2
  .amdhsa_user_sgpr_kernarg_segment_ptr 1
  .amdhsa_system_sgpr_workgroup_id_x 1
  .amdhsa_float_denorm_mode_32 3
  .amdhsa_float_denorm_mode_16_64 3
.end_amdhsa_kernel
""")
    return a.text()

if __name__ == "__main__":
    if "--prof" in sys.argv:
        PROF = True; sys.argv.remove("--prof")
    if "--dbgt" in sys.argv:
        DBGT = True; sys.argv.remove("--dbgt")
    t = build()
    out = sys.argv[1] if len(sys.argv) > 1 else "p.s"
    open(out, "w").write(t)
    if PROF: open(out + ".stamps", "w").write("\n".join(STAMPS))
    probs = check_hazards(t)
    print("lines", t.count("\n"), "bytes", len(t), "hazards", len(probs))
```

```python
import sys
from asmlib import Asm, vr, ar, sr, check_hazards

X1, X2, X3 = 0x0, 0x200000, 0x400000
V0, V1 = 0x600000, 0xA00000
GT  = 0xE00000
WF  = 0x1000000
WD  = 0x1400000
H0, H1 = 0x1600000, 0x1D00000
CSP = 0x2400000
STA, STC = 0x2440000, 0x24C0000
STB = 0x2700000
CSR = 226
CNT = 0x2500000
TS  = 0x2600000
XSZ = 0x200000
C1, C2, C3, C4, CS, CG = 0, 128, 160, 192, 224, 240
NCNT = 272
KA_X0, KA_HRE, KA_HIM, KA_WG, KA_WU, KA_WDN, KA_OUT, KA_DBG, KA_WS = 0, 24, 32, 48, 56, 64, 72, 80, 88
SRD3 = 0x00020000
PROF = False
DBGT = False
EXP1 = False
SC = " sc1"
vL16 = "v1"

class VM:
    def __init__(self, a): self.a = a; self.n = 0
    def issue(self, text):
        self.a(text); self.n += 1; return self.n
    def wait(self, opid):
        k = self.n - opid
        assert 0 <= k <= 63, k
        self.a(f"s_waitcnt vmcnt({k})")

_uid = [0]
def uid(p):
    _uid[0] += 1
    return f"{p}_{_uid[0]}"
_stamp_i = [0]
STAMPS = []
INLOOP = [False]
def stamp(a, label):
    if not PROF: return
    i = _stamp_i[0]
    a("s_memtime s[100:101]")
    a("s_waitcnt lgkmcnt(0)")
    if INLOOP[0]:
        _stamp_i[0] += 2
        STAMPS.append(label + " L0"); STAMPS.append(label + " L1")
        A, B = uid("st"), uid("st")
        a("s_cmp_lg_u32 s72, 0"); a(f"s_cbranch_scc1 {A}")
        a(f"v_writelane_b32 v255, s100, {i}"); a(f"s_branch {B}")
        a.label(A); a(f"v_writelane_b32 v255, s100, {i+1}"); a.label(B)
    else:
        _stamp_i[0] += 1
        STAMPS.append(label)
        a(f"v_writelane_b32 v255, s100, {i}")

def srd(a, d, base_lo, off, size):
    if isinstance(off, int) and off == 0:
        a(f"s_mov_b32 s{d}, s{base_lo}"); a(f"s_mov_b32 s{d+1}, s{base_lo+1}")
    else:
        a(f"s_add_u32 s{d}, s{base_lo}, {off if not isinstance(off,int) else hex(off)}")
        a(f"s_addc_u32 s{d+1}, s{base_lo+1}, 0")
    a(f"s_mov_b32 s{d+2}, {size if not isinstance(size,int) else hex(size)}")
    a(f"s_mov_b32 s{d+3}, {hex(SRD3)}")

def sel(a, dst, v0, v1):
    if v0 == v1: a(f"s_mov_b32 {dst}, {hex(v0)}"); return
    a(f"s_mul_i32 {dst}, s72, {hex(v1 - v0) if v1 >= v0 else str(v1 - v0)}")
    a(f"s_add_u32 {dst}, {dst}, {hex(v0)}")

def token_of_c(a, vdst, vc, vtmp):
    a(f"v_lshrrev_b32 {vtmp}, 4, {vc}")
    a(f"v_lshlrev_b32 {vtmp}, 2, {vtmp}")
    a(f"v_and_b32 {vdst}, 3, {vc}")
    a(f"v_add_u32 {vdst}, {vdst}, {vtmp}")
    a(f"v_lshlrev_b32 {vdst}, 8, {vdst}")
    a(f"v_bfe_u32 {vtmp}, {vc}, 2, 2")
    a(f"v_lshl_add_u32 {vdst}, {vtmp}, 3, {vdst}")


def poll(a, vaddr, vtarget, nlanes, base="s[4:5]"):
    L, D, S = uid("poll"), uid("polld"), uid("polls")
    a("s_cmp_lg_u32 s10, 0")
    a(f"s_cbranch_scc1 {S}")
    a("s_cmp_lg_u32 s73, 0")
    a(f"s_cbranch_scc1 {S}")
    a(f"s_mov_b64 exec, {hex((1 << nlanes) - 1)}")
    a("s_mov_b32 s74, 0")
    a.label(L)
    a(f"global_load_dword v2, {vaddr}, {base} sc1")
    a("s_add_u32 s74, s74, 1")
    a("s_waitcnt vmcnt(0)")
    a(f"v_cmp_gt_u32 vcc, {vtarget}, v2")
    a(f"s_cbranch_vccz {D}")
    a("s_cmp_lt_u32 s74, 40000")
    a(f"s_cbranch_scc1 {L}")
    a("s_mov_b32 s73, 1")
    a.label(D)
    a("s_mov_b64 exec, -1")
    a.label(S)
    a("s_barrier")

def signal(a, vaddr, nlanes_mask_sreg=None, npend=0):
    S = uid("sig")
    a(f"s_waitcnt vmcnt({npend})")
    a("s_barrier")
    a("s_cmp_lg_u32 s10, 0")
    a(f"s_cbranch_scc1 {S}")
    if nlanes_mask_sreg is None: a("s_mov_b64 exec, 1")
    else: a(f"s_mov_b64 exec, {nlanes_mask_sreg}")
    a("v_mov_b32 v2, 1")
    a(f"global_atomic_add {vaddr}, v2, s[4:5] sc1")
    a("s_mov_b64 exec, -1")
    a.label(S)

def cnt_off(idx): return CNT + idx*256

def resid_addr(a, s_tau, s_dt32, s_r, vXF, vRM, vS, vt1, vt2, vt3):
    a(f"s_lshl_b32 s54, {s_tau}, 15")
    a(f"s_lshl_b32 s55, {s_dt32}, 11")
    a("s_add_u32 s54, s54, s55")
    a(f"v_add_u32 {vXF}, s54, {vL16}")
    a(f"v_and_b32 {vt1}, 31, v0")
    token_of_c(a, vRM, vt1, vt2)
    a(f"s_and_b32 s55, {s_tau}, 7")
    a("s_lshl_b32 s55, s55, 5")
    a(f"s_add_u32 s55, s55, {s_r}")
    a(f"v_add_u32 {vRM}, s55, {vRM}")
    a(f"v_lshlrev_b32 {vRM}, 10, {vRM}")
    a(f"v_lshrrev_b32 {vt2}, 5, v0")
    a(f"v_lshl_add_u32 {vRM}, {vt2}, 4, {vRM}")
    a(f"s_lshl_b32 s55, {s_dt32}, 6")
    a(f"v_add_u32 {vRM}, s55, {vRM}")
    a(f"s_lshl_b32 s54, {s_tau}, 12")
    a(f"s_lshl_b32 s55, {s_dt32}, 8")
    a("s_add_u32 s54, s54, s55")
    a(f"v_lshlrev_b32 {vS}, 3, {vt1}")
    a(f"v_add_u32 {vS}, s54, {vS}")

def resid_epilogue(a, ACC, RES, U, P, vO0, vO1, vS, sOut, sSt, stats_cond):
    a(f"v_permlane32_swap_b32 v{RES}, v{RES+2}")
    a(f"v_permlane32_swap_b32 v{RES+1}, v{RES+3}")
    a(f"v_permlane32_swap_b32 v{RES+4}, v{RES+6}")
    a(f"v_permlane32_swap_b32 v{RES+5}, v{RES+7}")
    for i in range(8):
        a(f"v_lshlrev_b32 v{U+2*i}, 16, v{RES+i}")
        a(f"v_and_b32 v{U+2*i+1}, 0xffff0000, v{RES+i}")
    for i in range(8):
        a(f"v_pk_add_f32 {vr(ACC+2*i,2)}, {vr(ACC+2*i,2)}, {vr(U+2*i,2)}")
    for i in range(8):
        a(f"v_cvt_pk_bf16_f32 v{P+i}, v{ACC+2*i}, v{ACC+2*i+1}")
    Sx, Qx = P + 8, P + 10
    a(f"v_pk_add_f32 {vr(Sx,2)}, {vr(ACC,2)}, {vr(ACC+2,2)}")
    a(f"v_pk_mul_f32 {vr(Qx,2)}, {vr(ACC,2)}, {vr(ACC,2)}")
    a(f"v_permlane32_swap_b32 v{P}, v{P+2}")
    a(f"v_permlane32_swap_b32 v{P+1}, v{P+3}")
    a(f"v_permlane32_swap_b32 v{P+4}, v{P+6}")
    a(f"v_permlane32_swap_b32 v{P+5}, v{P+7}")
    a(f"v_pk_fma_f32 {vr(Qx,2)}, {vr(ACC+2,2)}, {vr(ACC+2,2)}, {vr(Qx,2)}")
    a(f"buffer_store_dwordx4 {vr(P,4)}, {vO0}, {sOut}, 0 offen{SC}")
    a(f"buffer_store_dwordx4 {vr(P+4,4)}, {vO1}, {sOut}, 0 offen{SC}")
    E = uid("nost")
    if stats_cond is not None:
        a(stats_cond); a(f"s_cbranch_scc1 {E}")
    for i in range(2, 8):
        a(f"v_pk_add_f32 {vr(Sx,2)}, {vr(Sx,2)}, {vr(ACC+2*i,2)}")
        a(f"v_pk_fma_f32 {vr(Qx,2)}, {vr(ACC+2*i,2)}, {vr(ACC+2*i,2)}, {vr(Qx,2)}")
    T = P + 12
    a(f"v_add_f32 v{T}, v{Sx}, v{Sx+1}")
    a(f"v_add_f32 v{T+1}, v{Qx}, v{Qx+1}")
    a(f"v_mov_b32 v{T+2}, v{T}")
    a(f"v_mov_b32 v{T+3}, v{T+1}")
    a.nop(2)
    a(f"v_permlane32_swap_b32 v{T}, v{T+2}")
    a(f"v_permlane32_swap_b32 v{T+1}, v{T+3}")
    a.nop(1)
    a(f"v_add_f32 v{T}, v{T}, v{T+2}")
    a(f"v_add_f32 v{T+1}, v{T+1}, v{T+3}")
    a("s_mov_b64 exec, 0xffffffff")
    a(f"buffer_store_dwordx2 {vr(T,2)}, {vS}, {sSt}, 0 offen{SC}")
    a("s_mov_b64 exec, -1")
    if stats_cond is not None: a.label(E)

P1_STATS = 131072
def p1_roles(a):
    a("s_and_b32 s13, s12, 7")
    a("s_lshr_b32 s14, s12, 3")
    a("s_and_b32 s50, s10, 1")
    a("s_lshr_b32 s51, s10, 1")

def p1_F_setup(a, vD0, vt):
    p1_roles(a)
    a(f"v_lshrrev_b32 v{vt}, 3, v0")
    a(f"v_and_b32 v{vt+1}, 7, v0")
    a("s_lshl_b32 s54, s13, 5")
    a("s_lshl_b32 s55, s50, 4")
    a("s_add_u32 s54, s54, s55")
    a("s_add_u32 s54, s54, 1")
    a("s_cmp_eq_u32 s51, 0")
    a("s_cselect_b32 s16, s60, s62"); a("s_cselect_b32 s17, s61, s63")
    a("s_mov_b32 s18, 0x80000"); a(f"s_mov_b32 s19, {hex(SRD3)}")
    for i in range(2):
        a(f"v_add_u32 v{vt+2}, {8*i}, v{vt}")
        a(f"v_lshrrev_b32 v{vt+3}, 1, v{vt+2}")
        a(f"v_xor_b32 v{vt+3}, v{vt+3}, v{vt+1}")
        a(f"v_lshlrev_b32 v{vt+3}, 4, v{vt+3}")
        a(f"v_add_u32 v{vt+2}, s54, v{vt+2}")
        a(f"v_lshl_add_u32 v{vD0+i}, v{vt+2}, 10, v{vt+3}")
    a("s_lshl_b32 s33, s50, 12")
    a("s_lshl_b32 s55, s51, 11")
    a("s_add_u32 s33, s33, s55")
def p1_F_items(vD0):
    L = []
    for s in range(8):
        for i in range(2):
            def f(a, vm, s=s, i=i):
                a(f"s_add_u32 m0, s33, {s*16384 + 8192 + i*1024}")
                a(f"s_movk_i32 s32, {s*128}")
                vm.issue(f"buffer_load_dwordx4 v{vD0+i}, s[16:19], s32 offen lds")
            L.append(f)
    return L
def p1_prefetch_F(a, vm):
    p1_F_setup(a, 8, 2)
    for f in p1_F_items(8): f(a, vm)

def gen_P1(a, layer0, xoff, stoff, voff, c4wait, c1idx, after_prologue=None, post_main=None, post_stores=None):
    NST = 8
    vm = VM(a)
    vD = [8, 9]
    vAa = {(0,0,0):10,(0,0,1):11,(0,1,0):12,(0,1,1):13,(1,0,0):14,(1,0,1):15,(1,1,0):16,(1,1,1):17}
    vBa = {(0,0):18,(0,1):19,(1,0):20,(1,1):21}
    vDir, vMir, vSW, vSR = 22, 23, 24, 25
    X, Y = 28, 60
    C0, C1r, S0, S1 = 92, 96, 100, 104
    SA = 108
    RS = 112
    T = 120
    rm = layer0
    if layer0:
        p1_prefetch_F(a, vm)
    p1_roles(a)
    a("v_lshrrev_b32 v2, 3, v0")
    a("v_and_b32 v3, 7, v0")
    a("s_lshl_b32 s54, s14, 1")
    a("s_add_u32 s54, s54, s50")
    if rm:
        a("s_lshl_b32 s55, s54, 5")
        a("s_add_u32 s55, s55, s11")
        a("s_lshl_b32 s57, s51, 4")
        for i in range(2):
            a(f"v_add_u32 v4, {8*i}, v2")
            a("v_add_u32 v4, s57, v4")
            token_of_c(a, "v5", "v4", "v6")
            a("v_add_u32 v5, s55, v5")
            a("v_bfe_u32 v6, v4, 1, 3")
            a("v_xor_b32 v6, v6, v3")
            a("v_lshlrev_b32 v6, 4, v6")
            a(f"v_lshl_add_u32 v{vD[i]}, v5, 10, v6")
        srd(a, 20, 6, 0, XSZ)
        ASTR = 128
    else:
        a("s_lshl_b32 s57, s51, 11")
        for i in range(2):
            a(f"v_add_u32 v{vD[i]}, s57, {vL16}")
            if i: a(f"v_add_u32 v{vD[i]}, 1024, v{vD[i]}")
        a("s_lshl_b32 s55, s11, 3")
        a("s_add_u32 s55, s55, s54")
        a("s_lshl_b32 s55, s55, 15")
        a(f"s_add_u32 s55, s55, {hex(xoff)}")
        srd(a, 20, 4, "s55", 32768)
        ASTR = 4096
    a("s_lshl_b32 s33, s50, 12")
    a("s_lshl_b32 s55, s51, 11")
    a("s_add_u32 s33, s33, s55")
    ids = {}
    late = {}
    a("s_mov_b32 s34, s33")
    def dmaA1(s):
        for i in range(2):
            a(f"s_add_u32 m0, s34, {s*16384 + i*1024}")
            a(f"s_mov_b32 s32, {s*ASTR}")
            ids[s] = vm.issue(f"buffer_load_dwordx4 v{vD[i]}, s[20:23], s32 offen{'' if rm else SC} lds")
    def dmaA(stages=range(8)):
        for s in stages: dmaA1(s)
    if rm:
        dmaA()
        if after_prologue: after_prologue(a, vm)
    a("v_and_b32 v2, 15, v0")
    a("v_lshrrev_b32 v3, 4, v0")
    a("v_lshrrev_b32 v4, 1, v2")
    a("s_lshl_b32 s52, s51, 2")
    a("v_add_u32 v5, s52, v3")
    a("v_xor_b32 v6, v5, v4")
    a("v_lshlrev_b32 v6, 4, v6")
    a("v_lshl_add_u32 v6, v2, 7, v6")
    a("v_xor_b32 v7, 64, v6")
    a("s_lshl_b32 s53, s51, 12")
    a("s_add_u32 s53, s53, 8192")
    a(f"v_add_u32 v{vBa[(0,0)]}, s53, v6")
    a(f"v_add_u32 v{vBa[(0,1)]}, s53, v7")
    a("s_lshl_b32 s53, s50, 12")
    if rm:
        for sub in range(2):
            a(f"s_add_u32 s54, s53, {sub*2048}")
            a(f"v_add_u32 v{vAa[(0,sub,0)]}, s54, v6")
            a(f"v_add_u32 v{vAa[(0,sub,1)]}, s54, v7")
    else:
        a("v_lshlrev_b32 v26, 9, v5")
        a("v_lshl_add_u32 v26, v2, 4, v26")
        a("v_xor_b32 v27, 2048, v26")
        for sub in range(2):
            a(f"s_add_u32 s54, s53, {sub*256}")
            a(f"v_add_u32 v{vAa[(0,sub,0)]}, s54, v26")
            a(f"v_add_u32 v{vAa[(0,sub,1)]}, s54, v27")
    for k, r_ in vAa.items():
        if k[0] == 1: a(f"v_add_u32 v{r_}, 0x10000, v{vAa[(0,)+k[1:]]}")
    for k, r_ in vBa.items():
        if k[0] == 1: a(f"v_add_u32 v{r_}, 0x10000, v{vBa[(0,k[1])]}")
    a("s_lshl_b32 s54, s11, 2")
    a("s_add_u32 s54, s54, s14")
    a("s_lshl_b32 s54, s54, 10")
    a("s_lshl_b32 s55, s50, 9")
    a("s_add_u32 s54, s54, s55")
    a("s_lshl_b32 s55, s13, 15")
    a("s_lshl_b32 s56, s51, 8")
    a("s_add_u32 s55, s55, s56")
    a("s_add_u32 s55, s55, s54")
    a("v_lshlrev_b32 v4, 4, v2")
    a("v_lshlrev_b32 v6, 19, v3")
    a(f"v_add_u32 v{vDir}, s55, v4")
    a(f"v_add_u32 v{vDir}, v{vDir}, v6")
    a("s_sub_u32 s55, 15, s13")
    a("s_lshl_b32 s55, s55, 15")
    a("s_add_u32 s55, s55, s54")
    a("s_add_u32 s55, s55, 496")
    a("s_sub_u32 s55, s55, s56")
    a("v_sub_u32 v5, s55, v4")
    a("v_sub_u32 v4, 8, v3")
    a("v_and_b32 v4, 7, v4")
    a("v_lshlrev_b32 v4, 19, v4")
    a(f"v_add_u32 v{vMir}, v5, v4")
    a("v_sub_u32 v4, 4, v3")
    a("v_lshlrev_b32 v4, 19, v4")
    a("v_add_u32 v27, v5, v4")
    vMir2 = 27
    for i in range(16): a(f"v_mov_b32 v{C0+i}, 0")
    for i in range(4): a(f"v_mov_b32 v{SA+i}, 0")
    a("s_mov_b32 s75, 0x3f803f80")
    a("s_lshl_b32 s54, s50, 9")
    a(f"s_add_u32 s54, s54, {P1_STATS}")
    a("v_and_b32 v4, 31, v0")
    a("s_lshl_b32 s55, s51, 3")
    a("s_add_u32 s55, s55, s54")
    a(f"v_lshlrev_b32 v{vSW}, 4, v4")
    a(f"v_add_u32 v{vSW}, s55, v{vSW}")
    a(f"v_lshlrev_b32 v{vSR}, 6, v3")
    a(f"v_add_u32 v{vSR}, s54, v{vSR}")
    def rstd_from_lds():
        for sub in range(2):
            for i in range(4):
                a(f"ds_read_b128 {vr(T+32+16*sub+4*i,4)}, v{vSR} offset:{sub*256+i*16}")
        a("s_waitcnt lgkmcnt(0)")
        a(f"s_mov_b32 s78, {hex(0x3b000000)}")
        a(f"s_mov_b32 s79, {hex(0x3b000000)}")
        for k in range(8):
            b = T + 32 + 4*k
            a(f"v_pk_add_f32 {vr(b,2)}, {vr(b,2)}, {vr(b+2,2)}")
        for k in range(8):
            b = T + 32 + 4*k
            a(f"v_pk_mul_f32 {vr(b,2)}, {vr(b,2)}, s[78:79]")
        for k in range(8):
            b = T + 32 + 4*k
            a(f"v_fma_f32 v{b+1}, -v{b}, v{b}, v{b+1}")
        for k in range(8):
            b = T + 32 + 4*k
            a(f"v_add_f32 v{b+1}, 0x3727c5ac, v{b+1}")
        for k in range(8):
            b = T + 32 + 4*k
            a(f"v_rsq_f32 v{RS+k}, v{b+1}")
    if rm:
        G = 28
        a("s_lshl_b32 s54, s11, 3")
        a("s_lshl_b32 s55, s14, 1")
        a("s_add_u32 s54, s54, s55")
        a("s_lshr_b32 s55, s13, 2")
        a("s_add_u32 s54, s54, s55")
        a("s_and_b32 s55, s54, 7")
        a("s_lshl_b32 s55, s55, 5")
        a("s_add_u32 s55, s55, s11")
        a(f"v_and_b32 v{G+4}, 31, v0")
        token_of_c(a, f"v{G}", f"v{G+4}", f"v{G+5}")
        a(f"v_add_u32 v{G}, s55, v{G}")
        a(f"v_lshrrev_b32 v{G+1}, 5, v0")
        a(f"v_lshlrev_b32 v{G+1}, 5, v{G+1}")
        srd(a, 24, 4, GT, 0x200000)
        a("s_and_b32 s57, s13, 3")
        a("s_lshl_b32 s57, s57, 3")
        a("s_lshl_b32 s58, s10, 1")
        a("s_add_u32 s57, s57, s58")
        a("s_lshl_b32 s58, s54, 15")
        a(f"v_add_u32 v{G+2}, s58, {vL16}")
        a(f"s_mov_b32 s80, {hex(0x3a000000)}")
        for x in range(2):
            a(f"s_add_u32 s59, s57, {x}")
            a("s_and_b32 s78, s59, 3")
            a("s_lshl_b32 s78, s78, 6")
            a("s_lshr_b32 s79, s59, 2")
            a("s_add_u32 s78, s78, s79")
            a(f"v_add_u32 v{G+3}, s78, v{G+1}")
            for q in range(4):
                a(f"v_add_u32 v{G+4}, {8*q}, v{G+3}")
                a(f"v_mul_u32_u24 v{G+4}, v{G+4}, v{G}")
                a(f"v_and_b32 v{G+4}, 0x7ff, v{G+4}")
                a(f"v_cvt_f32_u32 v{G+4}, v{G+4}")
                a(f"v_mul_f32 v{G+4}, s80, v{G+4}")
                a(f"v_cos_f32 v{G+6+2*q}, v{G+4}")
                a(f"v_sin_f32 v{G+6+2*q+1}, v{G+4}")
            a.nop(1)
            for q in range(4):
                a(f"v_cvt_pk_bf16_f32 v{G+16+4*x+q}, v{G+6+2*q}, v{G+6+2*q+1}")
            a("s_lshl_b32 s59, s59, 10")
            vm.issue(f"buffer_store_dwordx4 {vr(G+16+4*x,4)}, v{G+2}, s[24:27], s59 offen{SC}")
    else:
        a("s_lshl_b32 s54, s11, 2")
        a("s_add_u32 s54, s54, s14")
        a("s_lshl_b32 s54, s54, 8")
        a(f"s_add_u32 s54, s54, {hex(cnt_off(c4wait))}")
        a("v_mov_b32 v4, s54")
        a("v_mov_b32 v5, 8")
        stamp(a, "P1 poll")
        poll(a, "v4", "v5", 1)
        stamp(a, "P1 go")
        vm.n = 0
        a("s_lshl_b32 s54, s11, 3")
        a("s_lshl_b32 s55, s14, 1")
        a("s_add_u32 s54, s54, s55")
        a("s_add_u32 s54, s54, s50")
        a("s_lshl_b32 s54, s54, 13")
        a("s_lshl_b32 s55, s51, 12")
        a("s_add_u32 s54, s54, s55")
        a("v_and_b32 v4, 31, v0")
        a("v_lshrrev_b32 v5, 5, v0")
        a("v_lshlrev_b32 v5, 11, v5")
        a("v_lshl_add_u32 v5, v4, 3, v5")
        a("v_add_u32 v5, s54, v5")
        srd(a, 24, 4, stoff, 0x80000)
        dmaA(range(2))
        st_ids = [vm.issue(f"buffer_load_dwordx2 {vr(T+16+2*k,2)}, v5, s[24:27], 0 offen offset:{k*256}{SC}") for k in range(8)]
        dmaA(range(2, 4))
        for s_ in range(4): late[s_] = [(lambda s_=s_: dmaA1(s_ + 4))]
        vm.wait(st_ids[-1])
        b = T + 16
        for k in (4, 2, 1):
            for i in range(k): a(f"v_pk_add_f32 {vr(b+2*i,2)}, {vr(b+2*i,2)}, {vr(b+2*(i+k),2)}")
        a(f"v_mov_b32 v{b+2}, v{b}")
        a(f"v_mov_b32 v{b+3}, v{b+1}")
        a.nop(2)
        a(f"v_permlane32_swap_b32 v{b}, v{b+2}")
        a(f"v_permlane32_swap_b32 v{b+1}, v{b+3}")
        a.nop(1)
        a(f"v_pk_add_f32 {vr(b,2)}, {vr(b,2)}, {vr(b+2,2)}")
        a("s_mov_b64 exec, 0xffffffff")
        a(f"ds_write_b64 v{vSW}, {vr(b,2)}")
        a("s_mov_b64 exec, -1")
        a("s_waitcnt lgkmcnt(0)")
    srd(a, 28, 4, voff, 0x400000)
    def reads(s, R):
        hi = 1 if s >= 4 else 0
        off = (s - 4*hi) * 16384
        L = []
        for kk in range(2):
            for sub in range(2):
                L.append(f"ds_read_b128 {vr(R+8*kk+4*sub,4)}, v{vAa[(hi,sub,kk)]} offset:{off}")
            for cs in range(2):
                L.append(f"ds_read_b128 {vr(R+16+8*kk+4*cs,4)}, v{vBa[(hi,kk)]} offset:{off+cs*2048}")
        return L
    def mfma_list(M):
        L = []
        for kk in range(2):
            for cs in range(2):
                for sub in range(2):
                    acc = (C0, C1r)[sub] if cs == 0 else (S0, S1)[sub]
                    L.append(f"v_mfma_f32_16x16x32_bf16 {vr(acc,4)}, {vr(M+8*kk+4*sub,4)}, {vr(M+16+8*kk+4*cs,4)}, {vr(acc,4)}")
        return L
    def dots(M):
        L = []
        if rm:
            for sub in range(2):
                for i in range(4):
                    L.append(f"v_dot2_f32_bf16 v{SA+2*sub}, v{M+4*sub+i}, s75, v{SA+2*sub}")
                    L.append(f"v_dot2_f32_bf16 v{SA+2*sub+1}, v{M+4*sub+i}, v{M+4*sub+i}, v{SA+2*sub+1}")
        return L
    def mfmas(M):
        for x in mfma_list(M) + dots(M): a(x)
    sets = [X, Y]
    for s in range(NST):
        vm.wait(ids[s])
        a("s_barrier")
        if s == 0: stamp(a, "P1 first data")
        for f in late.get(s, []): f()
        R_ = reads(s, sets[s & 1])
        M_ = mfma_list(sets[(s - 1) & 1]) if s >= 1 else []
        D_ = dots(sets[(s - 1) & 1]) if s >= 1 else []
        for i in range(8):
            a(R_[i])
            if M_: a(M_[i])
            for x in D_[2*i:2*i+2]: a(x)
        if s == 0 and not rm: rstd_from_lds()
        a("s_waitcnt lgkmcnt(0)")
    mfmas(sets[(NST - 1) & 1])
    stamp(a, "P1 main done")
    if post_main: post_main(a)
    if rm:
        a.nop(3)
        for k in range(4): a(f"v_mov_b32 v{T+k}, v{SA+k}")
        a.nop(2)
        for k in range(4): a(f"v_permlane16_swap_b32 v{SA+k}, v{T+k}")
        a.nop(1)
        for k in range(4): a(f"v_add_f32 v{SA+k}, v{SA+k}, v{T+k}")
        for k in range(4): a(f"v_mov_b32 v{T+k}, v{SA+k}")
        a.nop(2)
        for k in range(4): a(f"v_permlane32_swap_b32 v{SA+k}, v{T+k}")
        a.nop(1)
        for k in range(4): a(f"v_add_f32 v{SA+k}, v{SA+k}, v{T+k}")
        a("v_cmp_gt_u32 vcc, 16, v0")
        a.nop(2)
        a(f"v_cndmask_b32 v{T}, v{SA+2}, v{SA}, vcc")
        a(f"v_cndmask_b32 v{T+1}, v{SA+3}, v{SA+1}, vcc")
        a("s_mov_b64 exec, 0xffffffff")
        a(f"ds_write_b64 v{vSW}, {vr(T,2)}")
        a("s_mov_b64 exec, -1")
        a("s_waitcnt lgkmcnt(0)")
        a("s_barrier")
        rstd_from_lds()
    else:
        a.nop(8)
    a.nop(1)
    for acc, rs in ((C0, RS), (C1r, RS+4), (S0, RS), (S1, RS+4)):
        a(f"v_pk_mul_f32 {vr(acc,2)}, {vr(acc,2)}, {vr(rs,2)}")
        a(f"v_pk_mul_f32 {vr(acc+2,2)}, {vr(acc+2,2)}, {vr(rs+2,2)}")
    AR, AI, DR, DI = 28, 32, 36, 40
    NEG = "neg_lo:[0,1] neg_hi:[0,1]"
    for h in (0, 2):
        a(f"v_pk_add_f32 {vr(AR+h,2)}, {vr(C0+h,2)}, {vr(C1r+h,2)}")
        a(f"v_pk_add_f32 {vr(DR+h,2)}, {vr(C0+h,2)}, {vr(C1r+h,2)} {NEG}")
        a(f"v_pk_add_f32 {vr(AI+h,2)}, {vr(S0+h,2)}, {vr(S1+h,2)}")
        a(f"v_pk_add_f32 {vr(DI+h,2)}, {vr(S0+h,2)}, {vr(S1+h,2)} {NEG}")
    ER, EI, FR, FI = 44, 46, 48, 50
    a(f"v_pk_add_f32 {vr(ER,2)}, {vr(AR,2)}, {vr(AR+2,2)}")
    a(f"v_pk_add_f32 {vr(EI,2)}, {vr(AI,2)}, {vr(AI+2,2)}")
    a(f"v_pk_add_f32 {vr(FR,2)}, {vr(AR,2)}, {vr(AR+2,2)} {NEG}")
    a(f"v_pk_add_f32 {vr(FI,2)}, {vr(AI,2)}, {vr(AI+2,2)} {NEG}")
    UR, UI = 60, 68
    a(f"v_add_f32 v{UR+0}, v{ER}, v{ER+1}");  a(f"v_add_f32 v{UI+0}, v{EI}, v{EI+1}")
    a(f"v_sub_f32 v{UR+4}, v{ER}, v{ER+1}");  a(f"v_sub_f32 v{UI+4}, v{EI}, v{EI+1}")
    a(f"v_add_f32 v{UR+2}, v{FR}, v{FI+1}");  a(f"v_sub_f32 v{UI+2}, v{FI}, v{FR+1}")
    a(f"v_sub_f32 v{UR+6}, v{FR}, v{FI+1}");  a(f"v_add_f32 v{UI+6}, v{FI}, v{FR+1}")
    g0r, g0i, h0r, h0i = 52, 53, 54, 55
    p, q, p2, q2 = 56, 57, 58, 59
    t1, t2, t3, t4 = 76, 77, 78, 79
    a(f"v_add_f32 v{g0r}, v{DR}, v{DI+2}");   a(f"v_sub_f32 v{g0i}, v{DI}, v{DR+2}")
    a(f"v_sub_f32 v{h0r}, v{DR}, v{DI+2}");   a(f"v_add_f32 v{h0i}, v{DI}, v{DR+2}")
    a(f"v_sub_f32 v{p}, v{DR+1}, v{DR+3}");   a(f"v_add_f32 v{q}, v{DI+1}, v{DI+3}")
    a(f"v_add_f32 v{p2}, v{DR+1}, v{DR+3}");  a(f"v_sub_f32 v{q2}, v{DI+1}, v{DI+3}")
    a(f"v_add_f32 v{t1}, v{p}, v{q}");        a(f"v_sub_f32 v{t2}, v{q2}, v{p2}")
    a(f"v_add_f32 v{t3}, v{p2}, v{q2}");      a(f"v_sub_f32 v{t4}, v{q}, v{p}")
    a(f"s_mov_b32 s75, {hex(0x3f3504f3)}")
    a(f"v_fma_f32 v{UR+1}, s75, v{t1}, v{g0r}");   a(f"v_fma_f32 v{UR+5}, -s75, v{t1}, v{g0r}")
    a(f"v_fma_f32 v{UI+1}, s75, v{t2}, v{g0i}");   a(f"v_fma_f32 v{UI+5}, -s75, v{t2}, v{g0i}")
    a(f"v_fma_f32 v{UR+3}, s75, v{t4}, v{h0r}");   a(f"v_fma_f32 v{UR+7}, -s75, v{t4}, v{h0r}")
    a(f"v_fma_f32 v{UI+3}, -s75, v{t3}, v{h0i}");  a(f"v_fma_f32 v{UI+7}, s75, v{t3}, v{h0i}")
    DD, MM = 80, 88
    for r in range(8): a(f"v_cvt_pk_bf16_f32 v{DD+r}, v{UR+r}, v{UI+r}")
    a("v_mov_b32 v76, 0x80000000")
    for r in range(8): a(f"v_xor_b32 v{MM+r}, v76, v{DD+r}")
    def transp(R):
        a(f"v_permlane32_swap_b32 v{R}, v{R+2}")
        a(f"v_permlane32_swap_b32 v{R+1}, v{R+3}")
        a.nop(2)
        a(f"v_permlane16_swap_b32 v{R}, v{R+1}")
        a(f"v_permlane16_swap_b32 v{R+2}, v{R+3}")
    transp(DD); transp(DD+4); transp(MM); transp(MM+4)
    a("s_mov_b32 s54, 0x200000")
    a(f"buffer_store_dwordx4 {vr(DD,4)}, v{vDir}, s[28:31], 0 offen{SC}")
    a(f"buffer_store_dwordx4 {vr(DD+4,4)}, v{vDir}, s[28:31], s54 offen{SC}")
    a(f"buffer_store_dwordx4 {vr(MM,4)}, v{vMir}, s[28:31], 0 offen{SC}")
    a(f"buffer_store_dwordx4 {vr(MM+4,4)}, v{vMir2}, s[28:31], 0 offen{SC}")
    stamp(a, "P1 stores issued")
    if post_stores: post_stores(a)
    a("s_lshr_b32 s54, s13, 1")
    a("v_mov_b32 v4, s54")
    a("s_sub_u32 s55, 7, s54")
    a("v_writelane_b32 v4, s55, 1")
    a("s_add_u32 s55, s54, 1")
    a("v_writelane_b32 v4, s55, 2")
    a("v_lshlrev_b32 v4, 3, v4")
    a("v_add_u32 v4, s11, v4")
    a("v_lshlrev_b32 v4, 8, v4")
    a(f"v_add_u32 v4, {hex(cnt_off(c1idx))}, v4")
    if rm:
        a("s_lshl_b32 s55, s11, 2")
        a("s_add_u32 s55, s55, s14")
        a("s_lshl_b32 s55, s55, 8")
        a(f"s_add_u32 s55, s55, {hex(cnt_off(CG))}")
        a("v_writelane_b32 v4, s55, 3")
    a("s_and_b32 s56, s13, 1")
    a("s_cmp_eq_u32 s13, 7")
    a("s_cselect_b32 s56, 0, s56")
    a("s_lshl_b32 s56, s56, 2")
    a(f"s_or_b32 s56, s56, {11 if rm else 3}")
    a("s_mov_b32 s57, 0")
    return "s[56:57]"

def t1_roles(a):
    a("s_and_b32 s13, s12, 7")
    a("s_lshr_b32 s14, s12, 3")
    a("s_and_b32 s50, s10, 1")
    a("s_lshr_b32 s51, s10, 1")

def p2_prefetch_G(a, stages):
    a("s_lshr_b32 s34, s12, 3")
    a("s_lshl_b32 s34, s34, 1")
    a("s_lshl_b32 s35, s11, 3")
    a("s_add_u32 s34, s34, s35")
    a("s_and_b32 s35, s10, 1")
    a("s_add_u32 s34, s34, s35")
    a("s_lshl_b32 s34, s34, 15")
    a(f"s_add_u32 s34, s34, {hex(GT)}")
    srd(a, 16, 4, "s34", 32768)
    a("s_lshl_b32 s34, s35, 12")
    a("s_lshr_b32 s35, s10, 1")
    a("s_lshl_b32 s35, s35, 11")
    a("s_add_u32 s34, s34, s35")
    for s in stages:
        a(f"s_add_u32 m0, s34, {s*16384 + 8192}")
        a(f"s_add_u32 s32, s35, {s*4096}")
        for i in range(2):
            a(f"buffer_load_dwordx4 {vL16}, s[16:19], s32 offen offset:{i*1024}{SC} lds")

def gen_P2(a):
    vm = VM(a)
    vA, vB = 8, 9
    vR0, vR1, vO0, vO1, vS = "v12", "v13", "v14", "v15", "v16"
    X, Y, ACC, RES = 28, 60, 92, 108
    t1_roles(a)
    a("s_lshl_b32 s36, s13, 1")
    a("s_add_u32 s52, s36, s50")
    a("s_lshl_b32 s37, s11, 3")
    a("s_lshl_b32 s38, s14, 1")
    a("s_add_u32 s37, s37, s38")
    a("s_add_u32 s53, s37, s51")
    resid_addr(a, "s53", "s52", "s11", "v17", "v18", vS, "v19", "v20", None)
    a("s_cmp_eq_u32 s41, 0")
    a("s_cselect_b64 vcc, -1, 0")
    a("s_cselect_b32 s56, 1024, 32")
    a(f"v_cndmask_b32 {vR0}, v18, v17, vcc")
    a(f"v_add_u32 {vR1}, s56, {vR0}")
    a(f"v_mov_b32 {vO0}, v17")
    a(f"v_add_u32 {vO1}, 1024, v17")
    a("s_add_u32 s20, s4, s42"); a("s_addc_u32 s21, s5, 0")
    a("s_cmp_eq_u32 s41, 0")
    a("s_cselect_b32 s20, s20, s6"); a("s_cselect_b32 s21, s21, s7")
    a(f"s_mov_b32 s22, {hex(XSZ)}"); a(f"s_mov_b32 s23, {hex(SRD3)}")
    a(f"buffer_load_dwordx4 {vr(RES,4)}, {vR0}, s[20:23], 0 offen{SC}")
    a(f"buffer_load_dwordx4 {vr(RES+4,4)}, {vR1}, s[20:23], 0 offen{SC}")
    a("s_lshl_b32 s54, s50, 12")
    a(f"v_add_u32 v{vA}, s54, {vL16}")
    a("s_lshl_b32 s54, s51, 12")
    a("s_add_u32 s54, s54, 8192")
    a(f"v_add_u32 v{vB}, s54, {vL16}")
    a(f"v_add_u32 v{vA+2}, 0x10000, v{vA}")
    a(f"v_add_u32 v{vB+2}, 0x10000, v{vB}")
    a("s_lshl_b32 s54, s11, 19")
    a("s_add_u32 s54, s54, s40")
    srd(a, 16, 4, "s54", 0x80000)
    a("s_lshl_b32 s54, s52, 15")
    a(f"v_add_u32 v21, s54, {vL16}")
    a("v_and_b32 v22, 31, v0")
    a("v_cmp_eq_u32 vcc, 0, v22")
    a("v_subrev_u32 v23, 16, v21")
    a("s_sub_u32 s55, s54, 32768")
    a("s_add_u32 s55, s55, 496")
    a("s_cmp_eq_u32 s52, 0")
    a("s_cselect_b32 s55, 0x7ff00000, s55")
    a("v_and_b32 v22, 32, v0")
    a("v_lshlrev_b32 v22, 4, v22")
    a("v_add_u32 v22, s55, v22")
    a("v_cndmask_b32 v23, v23, v22, vcc")
    a("s_cmp_lt_u32 s52, 8")
    a("s_cselect_b64 vcc, -1, 0")
    a("v_cndmask_b32 v21, v21, v23, vcc")
    srd(a, 24, 4, "s43", XSZ)
    srd(a, 28, 4, "s44", 0x40000)
    a("s_lshl_b32 s33, s50, 12")
    a("s_lshl_b32 s55, s51, 11")
    a("s_add_u32 s33, s33, s55")
    for i in range(16): a(f"v_mov_b32 v{ACC+i}, 0")
    a("s_lshl_b32 s54, s13, 11")
    a("s_add_u32 s54, s54, s45")
    a("v_lshlrev_b32 v4, 8, v0")
    a("v_add_u32 v4, s54, v4")
    a("s_sub_u32 s54, s13, 1")
    a("s_cmp_lt_u32 s54, 3")
    a("s_cselect_b32 s54, 12, 8")
    a("v_mov_b32 v5, s54")
    stamp(a, "P2 poll")
    poll(a, "v4", "v5", 8)
    stamp(a, "P2 go")
    ids = {}
    for s in range(8):
        a(f"s_add_u32 m0, s33, {s*16384}")
        a(f"s_add_u32 s32, s55, {s*4096}")
        for i in range(2):
            ids[s] = vm.issue(f"buffer_load_dwordx4 v21, s[16:19], s32 offen offset:{i*1024}{SC} lds")
    Lskip = uid("cs")
    a("s_cmp_lg_u32 s72, 0"); a(f"s_cbranch_scc1 {Lskip}")
    a("v_lshlrev_b32 v4, 8, v0")
    a(f"v_add_u32 v4, {hex(cnt_off(CS))}, v4")
    a("v_mov_b32 v5, 16")
    poll(a, "v4", "v5", 16)
    a.label(Lskip)
    def reads(s, R):
        hi = 2 if s >= 4 else 0
        off = (s % 4) * 16384
        L = []
        for k in range(4):
            L.append(f"ds_read_b128 {vr(R+4*k,4)}, v{vA+hi} offset:{off+k*1024}")
            L.append(f"ds_read_b128 {vr(R+16+4*k,4)}, v{vB+hi} offset:{off+k*1024}")
        return L
    def mfma_list(M):
        return [f"v_mfma_f32_32x32x16_bf16 {vr(ACC,16)}, {vr(M+4*k,4)}, {vr(M+16+4*k,4)}, {vr(ACC,16)}" for k in range(4)]
    sets = [X, Y]
    t0 = [(half, i) for half in range(2) for i in range(4)]
    for s in range(8):
        vm.wait(ids[s])
        a("s_barrier")
        if s == 0: stamp(a, "P2 first data")
        R_ = reads(s, sets[s & 1])
        M_ = mfma_list(sets[(s - 1) & 1]) if s >= 1 else []
        for i in range(8):
            a(R_[i])
            if M_ and i % 2 == 1: a(M_[i // 2])
        if s >= 4:
            for _ in range(2):
                half, i = t0.pop(0)
                p3_dma1(a, vm, 0, half, i, {})
        a("s_waitcnt lgkmcnt(0)")
    for x in mfma_list(sets[1]): a(x)
    stamp(a, "P2 main done")
    a("s_barrier")
    resid_epilogue(a, ACC, RES, X, Y, vO0, vO1, vS, "s[24:27]", "s[28:31]", None)
    stamp(a, "P2 stores issued")
    p3_dma(a, vm, 1, {})
    a("s_lshl_b32 s54, s11, 1")
    a("s_lshr_b32 s55, s14, 1")
    a("s_add_u32 s54, s54, s55")
    a("s_lshl_b32 s54, s54, 8")
    a("s_add_u32 s54, s54, s46")
    a("v_mov_b32 v4, s54")

def p3_init(a):
    a("s_and_b32 s13, s11, 3")
    a("s_lshl_b32 s13, s13, 2")
    a("s_and_b32 s14, s12, 3")
    a("s_add_u32 s13, s13, s14")
    a("s_lshr_b32 s14, s11, 2")
    a("s_lshl_b32 s14, s14, 3")
    a("s_lshr_b32 s15, s12, 2")
    a("s_add_u32 s89, s14, s15")
    a("s_mul_i32 s88, s13, 7")
    a("s_lshl_b32 s41, s88, 15")
    a(f"s_add_u32 s41, s41, {hex(WF)}")
    srd(a, 84, 4, "s41", 7*32768)
    a("s_lshl_b32 s83, s10, 13")

def P3SLOT(t): return (t + 4) % 5
def p3_dma1(a, vm, t, half, i, ids):
    if i == 0:
        a(f"s_add_u32 m0, s83, {P3SLOT(t)*32768 + half*4096}")
        a(f"s_add_u32 s35, s83, {t*32768 + half*4096}")
    ids[t] = vm.issue(f"buffer_load_dwordx4 {vL16}, s[84:87], s35 offen offset:{i*1024}{SC} lds")
def p3_dma(a, vm, t, ids):
    for half in range(2):
        for i in range(4): p3_dma1(a, vm, t, half, i, ids)

def gen_P3(a, pre_poll=None):
    vm = VM(a)
    dma_ids = {}
    vWb = [vL16, "v3", "v13"]
    NWR = 8
    WR = 16
    MB = 76
    ACC = 80
    T = 192
    STR = 192
    vQ, vC1 = 4, 5
    a("v_and_b32 v6, 31, v0")
    a("v_lshrrev_b32 v7, 5, v0")
    for t in (2, 3): p3_dma(a, vm, t, dma_ids)
    if pre_poll: pre_poll(a)
    a("s_lshl_b32 s14, s89, 2")
    a("s_add_u32 s14, s14, s10")
    a("s_lshl_b32 s33, s14, 15")
    a("s_add_u32 s33, s33, s40")
    srd(a, 20, 4, "s33", 32768)
    a("s_lshl_b32 s33, s14, 12")
    a("s_add_u32 s33, s33, s42")
    srd(a, 28, 4, "s33", 4096)
    a("s_mul_i32 s33, s14, 112")
    a("s_add_u32 s33, s33, s88")
    a("s_lshl_b32 s33, s33, 10")
    a("s_add_u32 s33, s33, s43")
    srd(a, 48, 4, "s33", 7*1024)
    a("s_movk_i32 s38, 4096")
    a("v_lshlrev_b32 v7, 11, v7")
    a("v_lshl_add_u32 v6, v6, 3, v7")
    a(f"v_add_u32 v3, 0x10000, {vL16}")
    a(f"v_add_u32 v13, 0x20000, {vL16}")
    a("s_lshl_b32 s54, s89, 8")
    a("s_add_u32 s54, s54, s44")
    a("v_mov_b32 v10, s54")
    a("v_mov_b32 v11, 16")
    stamp(a, "P3 poll")
    poll(a, "v10", "v11", 1)
    stamp(a, "P3 go")
    npre = vm.n
    x_ids = {}
    def xload(ks):
        if ks % 4 == 0: a(f"s_mov_b32 s36, {(ks//4)*4096}")
        x_ids[ks] = vm.issue(f"buffer_load_dwordx4 {ar(4*ks,4)}, {vL16}, s[20:23], s36 offen offset:{(ks%4)*1024}{SC}")
    NB = 10
    for ks in range(NB): xload(ks)
    stamp(a, "P3 burst issued")
    def stats_code():
        L = []
        S = STR
        for k in (4, 2, 1):
            for i in range(k):
                L.append(f"v_add_f32 v{S+2*i}, v{S+2*i}, v{S+2*(i+k)}")
                L.append(f"v_add_f32 v{S+2*i+1}, v{S+2*i+1}, v{S+2*(i+k)+1}")
        L += [f"v_mov_b32 v{S+2}, v{S}", f"v_mov_b32 v{S+3}, v{S+1}", "s_nop 1",
              f"v_permlane32_swap_b32 v{S}, v{S+2}", f"v_permlane32_swap_b32 v{S+1}, v{S+3}", "s_nop 0",
              f"v_add_f32 v{S}, v{S}, v{S+2}", f"v_add_f32 v{S+1}, v{S+1}, v{S+3}",
              f"v_mul_f32 v{S}, 0x3b000000, v{S}", f"v_mul_f32 v{S+1}, 0x3b000000, v{S+1}",
              f"v_fma_f32 v{S+1}, -v{S}, v{S}, v{S+1}",
              f"v_add_f32 v{vQ}, 0x3727c5ac, v{S+1}",
              f"v_rsq_f32 v{vC1}, v{vQ}",
              f"v_sub_f32 v{S+2}, 0, v{S}",
              f"v_mul_f32 v{vC1}, 0xbfb8aa3b, v{vC1}",
              f"v_cvt_pk_bf16_f32 v{S+3}, v{S+2}, v{S+2}",
              f"v_and_b32 v{S+4}, 0xffff0000, v{S+3}",
              f"v_sub_f32 v{S+4}, v{S+2}, v{S+4}",
              f"v_cvt_pk_bf16_f32 v{S+4}, v{S+4}, v{S+4}",
              f"v_and_b32 v{S+4}, 0xffff, v{S+4}",
              "v_cmp_gt_u32 vcc, 32, v0",
              f"v_mov_b32 v{MB+2}, 0", f"v_mov_b32 v{MB+3}, 0",
              f"v_cndmask_b32 v{MB}, 0, v{S+3}, vcc", f"v_cndmask_b32 v{MB+1}, 0, v{S+4}, vcc"]
        return [(4, x) for x in L]
    order = []
    for ks in range(32): order += [(0, ks), (1, ks), (2, ks)]
    for t in range(3, 7): order += [(t, ks) for ks in range(32)]
    N = len(order)
    last_use = {}
    for k, (t, ks) in enumerate(order): last_use[t] = k
    def wread(k):
        t, ks = order[k]
        off = P3SLOT(t)*32768 + ks*1024
        a(f"ds_read_b128 {vr(WR+4*(k%NWR),4)}, {vWb[off >> 16]} offset:{off & 0xffff}")
    def epi(t):
        A = ACC + 16*t
        E = T
        L = []
        for i in range(8): L.append((4, f"v_mul_f32 v{E+i}, v{vC1}, v{A+i}"))
        for i in range(8): L.append((8, f"v_exp_f32 v{E+i}, v{E+i}"))
        for i in range(8): L.append((4, f"v_mul_f32 v{E+8+i}, v{A+i}, v{A+8+i}"))
        for i in range(8): L.append((4, f"v_fma_f32 v{E+i}, v{E+i}, v{vQ}, v{vQ}"))
        for i in range(8): L.append((8, f"v_rcp_f32 v{E+i}, v{E+i}"))
        for i in range(8): L.append((4, f"v_mul_f32 v{E+8+i}, v{E+8+i}, v{E+i}"))
        for p in range(4): L.append((4, f"v_cvt_pk_bf16_f32 v{E+16+p}, v{E+8+2*p}, v{E+8+2*p+1}"))
        L.append((8, "s_nop 1"))
        L.append((4, f"v_permlane32_swap_b32 v{E+16}, v{E+18}"))
        L.append((4, f"v_permlane32_swap_b32 v{E+17}, v{E+19}"))
        L.append((4, ("ST", f"buffer_store_dwordx4 {vr(E+16,4)}, {vL16}, s[48:51], {'0' if t < 4 else 's38'} offen offset:{(t%4)*1024}{SC}")))
        return L
    pending = []
    def emit(budget, k):
        while pending and budget > 0 and pending[0][0] <= k:
            _, cost, x = pending.pop(0)
            if isinstance(x, tuple):
                if x[0] == "ST": vm.issue(x[1])
                elif x[0] == "VMW": vm.wait(x[1]())
            else: a(x)
            budget -= cost
    vq = []
    st_ids = []
    for ks in range(NB, 32): vq.append((3*(ks - NB), (lambda ks=ks: xload(ks))))
    for k_ in range(8): vq.append((3*k_ + 1, (lambda k_=k_: st_ids.append(vm.issue(f"buffer_load_dwordx2 {vr(STR+2*k_,2)}, v6, s[28:31], 0 offen offset:{k_*256}{SC}")))))
    n_ = 0
    for half in range(2):
        for i in range(4):
            vq.append((3*(32 - NB) + 3*n_, (lambda half=half, i=i: p3_dma1(a, vm, 4, half, i, dma_ids)))); n_ += 1
    for k_ in range(NWD1):
        vq.append((100 + 4*k_ + (1 if k_ % 2 else 0), (lambda k_=k_: wd_load(a, vm, k_))))
    vq.sort(key=lambda x: x[0])
    PF = NWR - 1
    ready = {0, 1, 2, 3}
    a(f"s_waitcnt vmcnt({vm.n - npre})")
    a("s_barrier")
    for k in range(PF): wread(k)
    nread = PF
    for k, (t, ks) in enumerate(order):
        if k == 97:
            a("s_barrier")
            n_ = 0
            for tt in (5, 6):
                for half in range(2):
                    for i in range(4):
                        vq.append((k + 1 + 2*n_, (lambda tt=tt, half=half, i=i: p3_dma1(a, vm, tt, half, i, dma_ids)))); n_ += 1
            vq.sort(key=lambda x: x[0])
        if k == 45:
            pending.append((k, 4, ("VMW", lambda: st_ids[-1])))
            for c, x in stats_code(): pending.append((k, c, x))
        if nread < N:
            tn = order[nread][0]
            if tn not in ready:
                vm.wait(dma_ids[tn]); a("s_barrier"); ready.add(tn)
            wread(nread); nread += 1
        a(f"s_waitcnt lgkmcnt({nread - 1 - k})")
        if t == 0: vm.wait(x_ids[ks])
        A = ACC + 16*t
        a(f"v_mfma_f32_32x32x16_bf16 {vr(A,16)}, {vr(WR+4*(k%NWR),4)}, {ar(4*ks,4)}, {'0' if ks == 0 else vr(A,16)}")
        if k == last_use[t]:
            a(f"v_mfma_f32_32x32x16_bf16 {vr(A,16)}, {vr(CSR+4*t,4)}, {vr(MB,4)}, {vr(A,16)}")
            for c, x in epi(t): pending.append((k + 4, c, x))
        budget = 12
        while vq and vq[0][0] <= k:
            vq.pop(0)[1](); budget -= 8
        emit(budget, k)
        if k == 95: assert not [p for p in pending if p[0] <= 45], "phase A fillers did not fit"
    stamp(a, "P3 main done")
    a.nop(12)
    emit(10**9, 10**9)
    stamp(a, "P3 stores issued")
    a("s_lshl_b32 s54, s89, 8")
    a("s_add_u32 s54, s54, s45")
    a("v_mov_b32 v4, s54")

NWD1 = 28
def p4_init(a):
    a("s_and_b32 s13, s12, 7")
    a("s_mul_i32 s13, s13, 229376")
    a(f"s_add_u32 s13, s13, {hex(WD)}")
    srd(a, 92, 4, "s13", 229376)
    a("s_mul_i32 s90, s10, 28672")

def wd_reg(n):
    return f"a[{128+4*n}:{131+4*n}]" if n < 28 else f"a[{4*(n-28)}:{4*(n-28)+3}]"
def wd_load(a, vm, n):
    a_, k = n // 28, n % 28
    if k % 4 == 0 or True:
        a(f"s_add_u32 s91, s90, {a_*114688 + (k//4)*4096}")
    vm.issue(f"buffer_load_dwordx4 {wd_reg(n)}, {vL16}, s[92:95], s91 offen offset:{(k%4)*1024}{SC}")

def cs_compute(a):
    CT = 16
    a("v_and_b32 v6, 31, v0")
    a("v_lshrrev_b32 v7, 5, v0")
    a("v_lshlrev_b32 v8, 6, v6")
    a("v_lshl_add_u32 v8, v7, 5, v8")
    a("s_lshl_b32 s33, s88, 11")
    a(f"s_add_u32 s33, s33, {hex(CSP)}")
    srd(a, 24, 4, "s33", 7*2048)
    for t in range(7):
        a(f"s_mov_b32 s39, {t*2048}")
        a(f"buffer_load_dwordx4 {vr(CT+8*t,4)}, v8, s[24:27], s39 offen{SC}")
        a(f"buffer_load_dwordx4 {vr(CT+8*t+4,4)}, v8, s[24:27], s39 offen offset:16{SC}")
    a("s_waitcnt vmcnt(0)")
    for t in range(7):
        b = CT + 8*t
        a(f"v_pk_add_f32 {vr(b,2)}, {vr(b,2)}, {vr(b+2,2)}")
        a(f"v_pk_add_f32 {vr(b+4,2)}, {vr(b+4,2)}, {vr(b+6,2)}")
        a(f"v_pk_add_f32 {vr(b,2)}, {vr(b,2)}, {vr(b+4,2)}")
        a(f"v_add_f32 v{b}, v{b}, v{b+1}")
        a(f"v_mov_b32 v{b+1}, v{b}")
    a.nop(1)
    for t in range(7): a(f"v_permlane32_swap_b32 v{CT+8*t}, v{CT+8*t+1}")
    a("v_cmp_gt_u32 vcc, 32, v0")
    for t in range(7):
        b = CT + 8*t; c = CSR + 4*t
        a(f"v_add_f32 v{b}, v{b}, v{b+1}")
        a(f"v_cvt_pk_bf16_f32 v{b+2}, v{b}, v{b}")
        a(f"v_and_b32 v{b+3}, 0xffff0000, v{b+2}")
        a(f"v_sub_f32 v{b+3}, v{b}, v{b+3}")
        a(f"v_cvt_pk_bf16_f32 v{b+3}, v{b+3}, v{b+3}")
        a(f"v_and_b32 v{b+2}, 0xffff, v{b+2}")
        a(f"v_lshl_or_b32 v{b+3}, v{b+3}, 16, v{b+2}")
        a(f"v_cndmask_b32 v{c}, 0, v{b+3}, vcc")
        a(f"v_cndmask_b32 v{c+1}, 0, v{b+2}, vcc")
        a(f"v_mov_b32 v{c+2}, 0")
        a(f"v_mov_b32 v{c+3}, 0")

def gen_P4(a, tail_prefetch):
    vm = VM(a)
    ACC = 16
    HR, NH, LA = 128, 16, 14
    RES = 80
    Y = 96
    U = 192
    vO = ["v8", "v9"]; vS = ["v10", "v11"]; vWr, vRd = "v12", "v13"
    for n in range(NWD1, 56): wd_load(a, vm, n)
    t1_roles(a)
    a("s_lshl_b32 s36, s13, 1")
    a("s_add_u32 s52, s36, s50")
    a("s_lshl_b32 s37, s11, 3")
    a("s_lshl_b32 s38, s14, 1")
    a("s_add_u32 s37, s37, s38")
    a("s_lshl_b32 s56, s52, 1")
    a("s_add_u32 s56, s56, s51")
    a("v_and_b32 v4, 31, v0")
    token_of_c(a, "v5", "v4", "v6")
    a("v_lshrrev_b32 v7, 5, v0")
    srd(a, 20, 4, "s42", XSZ)
    for b in range(2):
        a(f"s_add_u32 s53, s37, {b}")
        a("s_lshl_b32 s54, s53, 15")
        a("s_lshl_b32 s55, s56, 10")
        a("s_add_u32 s54, s54, s55")
        a(f"v_add_u32 v14, s54, {vL16}")
        vm.issue(f"buffer_load_dwordx4 {vr(RES+4*b,4)}, v14, s[20:23], 0 offen{SC}")
        a("s_and_b32 s55, s53, 7")
        a("s_lshl_b32 s55, s55, 5")
        a("s_add_u32 s55, s55, s11")
        a("v_add_u32 v15, s55, v5")
        a("v_lshlrev_b32 v15, 10, v15")
        a("v_lshl_add_u32 v15, v7, 4, v15")
        a("s_lshl_b32 s55, s56, 5")
        a("v_add_u32 v15, s55, v15")
        a("s_cmp_eq_u32 s41, 0")
        a("s_cselect_b64 vcc, -1, 0")
        a(f"v_cndmask_b32 {vO[b]}, v15, v14, vcc")
        a("s_lshl_b32 s54, s53, 13")
        a("s_lshl_b32 s55, s56, 8")
        a("s_add_u32 s54, s54, s55")
        a(f"v_lshlrev_b32 {vS[b]}, 3, v4")
        a(f"v_add_u32 {vS[b]}, s54, {vS[b]}")
    a("s_add_u32 s24, s4, s43"); a("s_addc_u32 s25, s5, 0")
    a("s_cmp_eq_u32 s41, 0")
    a("s_cselect_b32 s24, s24, s8"); a("s_cselect_b32 s25, s25, s9")
    a(f"s_mov_b32 s26, {hex(XSZ)}"); a(f"s_mov_b32 s27, {hex(SRD3)}")
    srd(a, 28, 4, "s44", 0x80000)
    a("s_lshl_b32 s54, s10, 14")
    a(f"v_add_u32 {vWr}, s54, {vL16}")
    a("s_lshl_b32 s54, s10, 11")
    a(f"v_add_u32 {vRd}, s54, {vL16}")
    a("s_mul_i32 s54, s37, 114688")
    a("s_add_u32 s54, s54, s40")
    srd(a, 20, 4, "s54", 229376)
    p1_F_setup(a, 88, 90)
    a("s_lshl_b32 s54, s11, 1")
    a("s_lshr_b32 s55, s14, 1")
    a("s_add_u32 s54, s54, s55")
    a("s_lshl_b32 s54, s54, 8")
    a("s_add_u32 s54, s54, s45")
    a("v_mov_b32 v4, s54")
    a("v_mov_b32 v5, 16")
    stamp(a, "P4 poll")
    poll(a, "v4", "v5", 1)
    stamp(a, "P4 go")
    hid = {}
    def hload(n):
        b, k = n // 28, n % 28
        a(f"s_add_u32 s91, s90, {b*114688 + (k//4)*4096}")
        hid[n] = vm.issue(f"buffer_load_dwordx4 {vr(HR+4*(n%NH),4)}, {vL16}, s[20:23], s91 offen offset:{(k%4)*1024}{SC}")
    for n in range(LA): hload(n)
    def reduce_items(b):
        L = []
        base = (4*(1-b))*16384
        hi = base >> 16
        for u in range(4):
            A = ACC + 16*(2*b + (u & 1)) + 8*(u >> 1)
            for q in range(2):
                L.append((8, f"ds_write_b128 v{U+30+b}, {vr(A+4*q,4)} offset:{u*2048 + q*1024}"))
        L.append((4, "s_waitcnt lgkmcnt(0)"))
        L.append((4, "s_barrier"))
        for src in range(4):
            for q in range(2):
                off = src*16384 + q*1024
                L.append((4, f"ds_read_b128 {vr(Y+8*src+4*q,4)}, v{U+32+b} offset:{off}"))
        R = RES + 4*b
        L.append((4, f"v_permlane32_swap_b32 v{R}, v{R+2}"))
        L.append((4, f"v_permlane32_swap_b32 v{R+1}, v{R+3}"))
        for i in range(4):
            L.append((4, f"v_lshlrev_b32 v{U+2*i}, 16, v{R+i}"))
            L.append((4, f"v_and_b32 v{U+2*i+1}, 0xffff0000, v{R+i}"))
        L.append((4, "s_waitcnt lgkmcnt(0)"))
        for i in range(8): L.append((4, f"v_add_f32 v{Y+i}, v{Y+i}, v{Y+8+i}"))
        for i in range(8): L.append((4, f"v_add_f32 v{Y+16+i}, v{Y+16+i}, v{Y+24+i}"))
        for i in range(8): L.append((4, f"v_add_f32 v{U+i}, v{U+i}, v{Y+i}"))
        for i in range(8): L.append((4, f"v_add_f32 v{U+i}, v{U+i}, v{Y+16+i}"))
        P = U + 8
        for i in range(4): L.append((4, f"v_cvt_pk_bf16_f32 v{P+i}, v{U+2*i}, v{U+2*i+1}"))
        Sx, Qx = U + 12, U + 13
        L.append((4, f"v_add_f32 v{Sx}, v{U}, v{U+1}"))
        L.append((4, f"v_mul_f32 v{Qx}, v{U}, v{U}"))
        L.append((4, f"v_permlane32_swap_b32 v{P}, v{P+2}"))
        L.append((4, f"v_permlane32_swap_b32 v{P+1}, v{P+3}"))
        L.append((4, f"v_fma_f32 v{Qx}, v{U+1}, v{U+1}, v{Qx}"))
        L.append((4, ("ST", f"buffer_store_dwordx4 {vr(P,4)}, {vO[b]}, s[24:27], 0 offen{SC}")))
        for i in range(2, 8):
            L.append((4, f"v_add_f32 v{Sx}, v{Sx}, v{U+i}"))
            L.append((4, f"v_fma_f32 v{Qx}, v{U+i}, v{U+i}, v{Qx}"))
        T2 = U + 14
        L += [(4, f"v_mov_b32 v{T2}, v{Sx}"), (4, f"v_mov_b32 v{T2+1}, v{Qx}"), (8, "s_nop 1"),
              (4, f"v_permlane32_swap_b32 v{Sx}, v{T2}"), (4, f"v_permlane32_swap_b32 v{Qx}, v{T2+1}"), (4, "s_nop 0"),
              (4, f"v_add_f32 v{U+16}, v{Sx}, v{T2}"), (4, f"v_add_f32 v{U+17}, v{Qx}, v{T2+1}"),
              (12, ("STX", f"buffer_store_dwordx2 {vr(U+16,2)}, {vS[b]}, s[28:31], 0 offen{SC}"))]
        return L
    for b in range(2):
        base = (4*(1-b))*16384
        a(f"v_add_u32 v{U+30+b}, {hex(base)}, {vWr}")
        a(f"v_add_u32 v{U+32+b}, {hex(base)}, {vRd}")
    pending = []
    def emit(budget):
        while pending and budget > 0:
            cost, x = pending.pop(0)
            if isinstance(x, tuple):
                if x[0] == "STX": a("s_mov_b64 exec, 0xffffffff")
                vm.issue(x[1])
                if x[0] == "STX": a("s_mov_b64 exec, -1")
            else: a(x)
            budget -= cost
    tail = list(tail_prefetch) if tail_prefetch else []
    for n in range(56):
        b, k = n // 28, n % 28
        vm.wait(hid[n])
        if n == 0: stamp(a, "P4 first data")
        for a_ in range(2):
            A = ACC + 16*(2*b + a_)
            a(f"v_mfma_f32_32x32x16_bf16 {vr(A,16)}, {wd_reg(28*a_ + k)}, {vr(HR+4*(n%NH),4)}, {'0' if k == 0 else vr(A,16)}")
        if n + LA < 56: hload(n + LA)
        elif tail:
            for _ in range(2):
                if tail: tail.pop(0)(a, vm)
        if n == 28: a.nop(10)
        if n == 28: pending.extend(reduce_items(0))
        emit(24)
    while tail: tail.pop(0)(a, vm)
    emit(10**9)
    stamp(a, "P4 main done")
    a.nop(12)
    pending.extend(reduce_items(1))
    emit(10**9)
    stamp(a, "P4 stores issued")
    a("s_lshl_b32 s54, s11, 2")
    a("s_add_u32 s54, s54, s14")
    a("s_lshl_b32 s54, s54, 8")
    a("s_add_u32 s54, s54, s46")
    a("v_mov_b32 v4, s54")

SU_WF = 132096
SU_WD = 146432
def setup_loads(a, vm):
    a("s_and_b32 s54, s2, 15")
    a("s_lshr_b32 s55, s2, 4")
    a("s_mul_i32 s56, s54, 224")
    a("s_mul_i32 s57, s55, 32*3584")
    a("s_add_u32 s56, s56, s57")
    srd(a, 24, 64, 0, 512*3584)
    srd(a, 28, 66, 0, 512*3584)
    a("s_movk_i32 s58, 4682")
    a("s_movk_i32 s59, 3584")
    for n in range(4):
        E = uid("su")
        if n == 3:
            a("s_cmp_ge_u32 s10, 2"); a(f"s_cbranch_scc1 {E}")
        a(f"s_add_u32 s36, s10, {4*n}")
        a("s_cmp_ge_u32 s36, 7")
        a("s_cselect_b32 s37, 7, 0")
        a("s_sub_u32 s37, s36, s37")
        a("s_lshl_b32 s38, s37, 6")
        a("v_add_u32 v4, s38, v0")
        a("v_mul_u32_u24 v5, s58, v4")
        a("v_lshrrev_b32 v5, 16, v5")
        a("v_mul_u32_u24 v6, 14, v5")
        a("v_sub_u32 v6, v4, v6")
        a("v_mul_u32_u24 v5, s59, v5")
        a("v_lshl_add_u32 v5, v6, 4, v5")
        a("s_lshl_b32 s38, s36, 10")
        a(f"s_add_u32 m0, s38, {SU_WF}")
        a("s_cmp_ge_u32 s36, 7")
        U, J = uid("suu"), uid("suj")
        a(f"s_cbranch_scc1 {U}")
        vm.issue("buffer_load_dwordx4 v5, s[24:27], s56 offen lds")
        a(f"s_branch {J}")
        a.label(U)
        a("buffer_load_dwordx4 v5, s[28:31], s56 offen lds")
        a.label(J)
        if n == 3:
            vm.n -= 1
            a.label(E)
    E = uid("su")
    a("s_cmp_ge_u32 s2, 224"); a(f"s_cbranch_scc1 {E}")
    srd(a, 24, 68, 0, 1792*1024)
    a("s_lshr_b32 s54, s2, 1")
    a("s_lshl_b32 s54, s54, 14")
    a("s_and_b32 s55, s2, 1")
    a("s_lshl_b32 s55, s55, 9")
    a("s_add_u32 s54, s54, s55")
    a("s_lshl_b32 s55, s10, 12")
    a("s_add_u32 s54, s54, s55")
    a("v_lshrrev_b32 v4, 5, v0")
    a("v_and_b32 v5, 31, v0")
    a("v_lshlrev_b32 v5, 4, v5")
    a("v_lshl_add_u32 v5, v4, 10, v5")
    a("s_lshl_b32 s55, s10, 11")
    for i in range(2):
        a(f"s_add_u32 m0, s55, {SU_WD + i*1024}")
        a(f"s_add_u32 s36, s54, {i*2048}")
        a("buffer_load_dwordx4 v5, s[24:27], s36 offen lds")
    a.label(E)

def setup_process(a):
    a("v_lshrrev_b32 v4, 4, v0")
    a("v_lshrrev_b32 v5, 1, v4")
    a("v_lshlrev_b32 v5, 3, v5")
    a("v_bfe_u32 v6, v0, 2, 2")
    a("v_add_u32 v5, v5, v6")
    a("v_and_b32 v4, 1, v4")
    a("v_and_b32 v6, 3, v0")
    a("v_mul_u32_u24 v7, 224, v5")
    a("v_mul_u32_u24 v8, 7168, v4") if False else None
    a("s_movk_i32 s54, 7168")
    a("v_mad_u32_u24 v7, v4, s54, v7")
    a("v_lshl_add_u32 v7, v6, 3, v7")
    a("s_lshl_b32 s55, s10, 5")
    a(f"s_add_u32 s55, s55, {SU_WF}")
    a("v_add_u32 v7, s55, v7")
    for i in range(4): a(f"v_mov_b32 v{8+i}, 0x3f803f80")
    srd(a, 24, 4, WF, 0x380000)
    srd(a, 28, 4, CSP, 112*2048)
    a("s_and_b32 s54, s2, 15")
    a("s_mul_i32 s54, s54, 7")
    a("s_lshr_b32 s56, s2, 4")
    a("v_and_b32 v12, 31, v0")
    a("v_lshlrev_b32 v12, 6, v12")
    for x in range(2):
        E = uid("sp")
        if x == 1:
            a("s_cmp_eq_u32 s10, 3"); a(f"s_cbranch_scc1 {E}")
        for ks in range(2):
            R = 16 + 4*ks
            a(f"ds_read_b64_tr_b16 {vr(R,2)}, v7 offset:{ks*16*224 + x*128}")
            a(f"ds_read_b64_tr_b16 {vr(R+2,2)}, v7 offset:{ks*16*224 + 4*224 + x*128}")
        a("s_add_u32 s57, s54, s10")
        if x: a("s_add_u32 s57, s57, 4")
        a("s_lshl_b32 s58, s57, 15")
        a("s_lshl_b32 s59, s56, 11")
        a("s_add_u32 s58, s58, s59")
        a("s_waitcnt lgkmcnt(0)")
        for ks in range(2):
            R = 16 + 4*ks
            a(f"buffer_store_dwordx4 {vr(R,4)}, {vL16}, s[24:27], s58 offen offset:{ks*1024}{SC}")
            a(f"v_mfma_f32_32x32x16_bf16 v[32:47], v[8:11], {vr(R,4)}, {'0' if ks == 0 else 'v[32:47]'}")
        a("s_lshl_b32 s57, s57, 11")
        a("s_lshl_b32 s59, s56, 2")
        a("s_add_u32 s57, s57, s59")
        a.nop(12)
        a("s_mov_b64 exec, 0xffffffff")
        a(f"buffer_store_dword v32, v12, s[28:31], s57 offen{SC}")
        a("s_mov_b64 exec, -1")
        if x == 1: a.label(E)
    E = uid("sp")
    a("s_cmp_ge_u32 s2, 224"); a(f"s_cbranch_scc1 {E}")
    a("v_lshlrev_b32 v7, 9, v5")
    a("v_lshl_add_u32 v7, v4, 5, v7")
    a("v_lshl_add_u32 v7, v6, 3, v7")
    a("s_lshl_b32 s55, s10, 7")
    a(f"s_add_u32 s55, s55, {SU_WD}")
    a("v_add_u32 v7, s55, v7")
    srd(a, 24, 4, WD, 0x1C0000)
    for x in range(2):
        R = 16 + 4*x
        a(f"ds_read_b64_tr_b16 {vr(R,2)}, v7 offset:{x*64}")
        a(f"ds_read_b64_tr_b16 {vr(R+2,2)}, v7 offset:{4*512 + x*64}")
    a("s_and_b32 s54, s2, 1")
    a("s_lshl_b32 s54, s54, 3")
    a("s_lshl_b32 s55, s10, 1")
    a("s_add_u32 s54, s54, s55")
    a("s_mul_i32 s54, s54, 112")
    a("s_lshr_b32 s55, s2, 1")
    a("s_add_u32 s54, s54, s55")
    a("s_lshl_b32 s54, s54, 10")
    a("s_add_u32 s55, s54, 114688")
    a("s_waitcnt lgkmcnt(0)")
    a(f"buffer_store_dwordx4 v[16:19], {vL16}, s[24:27], s54 offen{SC}")
    a(f"buffer_store_dwordx4 v[20:23], {vL16}, s[24:27], s55 offen{SC}")
    a.label(E)

def build():
    a = Asm()
    name = "interleave_layers__spectral_fnet__swiglu_ffn__prompt_kernel"
    hdr = open("interleave_layers__spectral_fnet__swiglu_ffn__prompt.s.ref").read().split("\n")
    hdr = [l for l in hdr if l.startswith(";") and "@launch" not in l and "Override launch" not in l and "grid=ceil" not in l]
    for l in hdr: a.raw(l)
    a.raw("; @launch grid=(256,1,1) block=(256,1,1) lds=163840")
    a.raw('.amdgcn_target "amdgcn-amd-amdhsa--gfx950"')
    a.raw(".text")
    a.raw(f".globl {name}"); a.raw(".p2align 8"); a.raw(f".type {name},@function"); a.raw(f"{name}:")
    a("s_cmp_ge_u32 s2, 256"); a("s_cbranch_scc1 k_exit")
    a(f"s_load_dwordx2 s[4:5], s[0:1], {KA_WS}")
    a(f"s_load_dwordx2 s[6:7], s[0:1], {KA_X0}")
    a(f"s_load_dwordx4 s[60:63], s[0:1], {KA_HRE}")
    a(f"s_load_dwordx4 s[64:67], s[0:1], {KA_WG}")
    a(f"s_load_dwordx4 s[68:71], s[0:1], {KA_WDN}")
    a(f"s_load_dwordx2 s[96:97], s[0:1], {KA_DBG}")
    a("v_lshrrev_b32 v1, 6, v0")
    a("v_and_b32 v0, 63, v0")
    a("v_readfirstlane_b32 s10, v1")
    a(f"v_lshlrev_b32 {vL16}, 4, v0")
    a("s_and_b32 s11, s2, 7")
    a("s_lshr_b32 s12, s2, 3")
    a("s_mov_b32 s73, 0")
    if PROF: a("v_mov_b32 v255, 0")
    a("s_waitcnt lgkmcnt(0)")
    a("s_mov_b32 s8, s70"); a("s_mov_b32 s9, s71")
    if DBGT:
        a("s_memrealtime s[100:101]"); a("s_waitcnt lgkmcnt(0)"); a("s_mov_b32 s82, s100")
    if PROF:
        a("s_memrealtime s[100:101]"); a("s_waitcnt lgkmcnt(0)"); a("v_writelane_b32 v255, s100, 62")
    stamp(a, "entry")
    p3_init(a)
    p4_init(a)
    Z = uid("z")
    a("s_cmp_lg_u32 s2, 0"); a(f"s_cbranch_scc1 {Z}")
    a("s_cmp_lg_u32 s10, 3"); a(f"s_cbranch_scc1 {Z}")
    a("v_lshlrev_b32 v2, 8, v0")
    a(f"v_add_u32 v2, {hex(CNT)}, v2")
    a("v_mov_b32 v3, 0")
    for i in range(5):
        a("global_store_dword v2, v3, s[4:5] sc1")
        a("v_add_u32 v2, 0x4000, v2")
    a("s_waitcnt vmcnt(0)")
    a("v_mov_b32 v2, 0"); a("v_mov_b32 v3, 1")
    a("s_mov_b64 exec, 1")
    a("global_store_dword v2, v3, s[96:97] sc1")
    a("s_mov_b64 exec, -1")
    a.label(Z)
    su_vm = {}
    def ap(a, vm):
        setup_loads(a, vm)
    mask = gen_P1(a, True, 0, 0, V0, None, C1, after_prologue=ap)
    a("v_mov_b32 v6, 0"); a("v_mov_b32 v7, 1")
    a("s_waitcnt vmcnt(0)")
    poll(a, "v6", "v7", 1, base="s[96:97]")
    signal(a, "v4", mask)
    stamp(a, "P1 signalled")
    vmx = VM(a)
    p2_prefetch_G_deferred = True
    setup_process(a)
    a("s_lshr_b32 s54, s2, 4")
    a("s_lshl_b32 s54, s54, 8")
    a(f"s_add_u32 s54, s54, {hex(cnt_off(CS))}")
    a("v_mov_b32 v4, s54")
    signal(a, "v4")
    stamp(a, "setup signalled")
    a("s_mov_b32 s72, 0")
    a("s_lshl_b32 s54, s11, 2")
    a("s_lshr_b32 s55, s12, 3")
    a("s_add_u32 s54, s54, s55")
    a("s_lshl_b32 s54, s54, 8")
    a(f"s_add_u32 s54, s54, {hex(cnt_off(CG))}")
    a("v_mov_b32 v4, s54"); a("v_mov_b32 v5, 8")
    poll(a, "v4", "v5", 1)
    stamp(a, "CG seen")
    p2_prefetch_G(a, range(8))
    a.label("layer_loop")
    INLOOP[0] = True
    sel(a, "s40", V0, V1); sel(a, "s41", 1, 0); sel(a, "s42", X2, X2); sel(a, "s43", X1, X3); sel(a, "s44", STA, STC)
    sel(a, "s45", cnt_off(C1), cnt_off(C1+64)); sel(a, "s46", cnt_off(C2), cnt_off(C2+16))
    gen_P2(a)
    signal(a, "v4", npend=8)
    stamp(a, "P2 signalled")
    sel(a, "s40", X1, X3); sel(a, "s42", STA, STC); sel(a, "s43", H0, H1)
    sel(a, "s44", cnt_off(C2), cnt_off(C2+16)); sel(a, "s45", cnt_off(C3), cnt_off(C3+16))
    def pre3(a):
        L = uid("cs")
        a("s_cmp_lg_u32 s72, 0"); a(f"s_cbranch_scc1 {L}")
        cs_compute(a)
        a.label(L)
    gen_P3(a, pre3)
    signal(a, "v4")
    stamp(a, "P3 signalled")
    sel(a, "s40", H0, H1); sel(a, "s41", 0, 1); sel(a, "s42", X1, X3); sel(a, "s43", X2, X2); sel(a, "s44", STB, STB)
    sel(a, "s45", cnt_off(C3), cnt_off(C3+16)); sel(a, "s46", cnt_off(C4), cnt_off(C4))
    gen_P4(a, p1_F_items(88))
    a("s_cmp_lg_u32 s72, 0"); a("s_cbranch_scc1 k_done")
    signal(a, "v4")
    stamp(a, "P4 signalled")
    INLOOP[0] = False
    mask = gen_P1(a, False, X2, STB, V1, C4, C1+64, post_main=lambda a: a("s_barrier"), post_stores=lambda a: p2_prefetch_G(a, range(4)))
    signal(a, "v4", mask, npend=8)
    stamp(a, "P1b signalled")
    p2_prefetch_G(a, range(4, 8))
    a("s_mov_b32 s72, 1")
    a("s_branch layer_loop")
    a.label("k_done")
    if DBGT:
        a("s_waitcnt vmcnt(0)")
        a("s_memrealtime s[100:101]"); a("s_waitcnt lgkmcnt(0)")
        a("s_sub_u32 s100, s100, s82")
        a("v_mov_b32 v3, s100")
        a("s_lshr_b32 s54, s2, 4")
        a("s_lshl_b32 s54, s54, 2")
        a("v_mov_b32 v2, s54")
        a("s_and_b32 s55, s2, 15")
        a("s_cmp_lg_u32 s55, 0")
        a("s_cbranch_scc1 k_exit")
        a("s_cmp_eq_u32 s2, 0")
        a("s_cbranch_scc1 k_exit")
        a("s_mov_b64 exec, 1")
        a("global_store_dword v2, v3, s[96:97]")
    if PROF:
        a("s_waitcnt vmcnt(0)")
        a("s_memtime s[100:101]"); a("s_waitcnt lgkmcnt(0)"); a("v_writelane_b32 v255, s100, 61")
        a("s_memrealtime s[100:101]"); a("s_waitcnt lgkmcnt(0)"); a("v_writelane_b32 v255, s100, 63")
        a("s_lshl_b32 s54, s2, 2"); a("s_add_u32 s54, s54, s10"); a("s_lshl_b32 s54, s54, 8")
        a(f"s_add_u32 s54, s54, {hex(TS)}")
        a("v_lshlrev_b32 v2, 2, v0"); a("v_add_u32 v2, s54, v2")
        a("global_store_dword v2, v255, s[4:5]")
    a.label("k_exit")
    a("s_endpgm")
    a.raw('.section .rodata,"a"')
    a.raw(f""".p2align 6
.amdhsa_kernel {name}
  .amdhsa_next_free_vgpr 512
  .amdhsa_next_free_sgpr 102
  .amdhsa_accum_offset 256
  .amdhsa_group_segment_fixed_size 0
  .amdhsa_kernarg_size 96
  .amdhsa_user_sgpr_count 2
  .amdhsa_user_sgpr_kernarg_segment_ptr 1
  .amdhsa_system_sgpr_workgroup_id_x 1
  .amdhsa_float_denorm_mode_32 3
  .amdhsa_float_denorm_mode_16_64 3
.end_amdhsa_kernel
""")
    return a.text()

if __name__ == "__main__":
    if "--prof" in sys.argv:
        PROF = True; sys.argv.remove("--prof")
    if "--exp1" in sys.argv:
        EXP1 = True; sys.argv.remove("--exp1")
    if "--dbgt" in sys.argv:
        DBGT = True; sys.argv.remove("--dbgt")
    t = build()
    out = sys.argv[1] if len(sys.argv) > 1 else "p.s"
    open(out, "w").write(t)
    if PROF: open(out + ".stamps", "w").write("\n".join(STAMPS))
    probs = check_hazards(t)
    print("lines", t.count("\n"), "bytes", len(t), "hazards", len(probs))
```
